```python
import torch

def _softmax(x, axis=-1):
    return torch.softmax(x, dim=axis)
def _gelu(x):
    return torch.nn.functional.gelu(x, approximate="tanh")
def _silu(x):
    return torch.nn.functional.silu(x)
def _sigmoid(x):
    return torch.sigmoid(x)
def _layernorm(x, axis=-1, eps=1e-5):
    m = x.mean(dim=axis, keepdim=True)
    v = x.var(dim=axis, keepdim=True, unbiased=False)
    return (x - m) / torch.sqrt(v + eps)
def _scatter_add(tgt, idx, src, axis=0):
    return tgt.clone().index_add_(axis, idx, src)
def _segment_sum(src, seg, n):
    out = torch.zeros((n,) + src.shape[1:], dtype=src.dtype)
    return out.index_add_(0, seg, src)
def _pad(x, pw):
    flat = tuple(v for pair in reversed(pw) for v in pair)
    return torch.nn.functional.pad(x, flat)

kernel_name = 'sequential_preLN__ssm_conv_h3__glu_gated_glu__prompt'

def setup_inputs():

    _w = (lambda a: (lambda t: t.to(torch.bfloat16) if t.is_floating_point() else t)(torch.as_tensor(a)))
    def _A_setup():
        B, S, D = 1, 2048, 512
        ks = 4
        return {
            "q": _w((lambda *s: torch.randn(*s, dtype=torch.bfloat16) * 0.05)(B, S, D)),
            "k": _w((lambda *s: torch.randn(*s, dtype=torch.bfloat16) * 0.4)(B, S, D)),
            "v": _w((lambda *s: torch.randn(*s, dtype=torch.bfloat16) * 0.4)(B, S, D)),
            "shift_k": _w((lambda *s: torch.randn(*s, dtype=torch.bfloat16) * 0.4)(D, ks) * 0.5),
            "ssm_k": _w((lambda *s: torch.randn(*s, dtype=torch.bfloat16) * 0.4)(D, S) * (1.0 / S ** 0.5)),
            "ssm_D": _w((lambda *s: torch.randn(*s, dtype=torch.bfloat16) * 0.4)(D)),
        }
    _A_in = _A_setup()

    def _B_setup():
        B, S, D, F = 1, 2048, 512, 1376
        return {
            "x": _w((lambda *s: torch.randn(*s, dtype=torch.bfloat16) * 0.05)(B, S, D)),
            "w_gate": _w((lambda *s: torch.randn(*s, dtype=torch.bfloat16) * 0.05)(D, F)),
            "w_up": _w((lambda *s: torch.randn(*s, dtype=torch.bfloat16) * 0.05)(D, F)),
            "w_down": _w((lambda *s: torch.randn(*s, dtype=torch.bfloat16) * 0.05)(F, D)),
        }
    _B_in = _B_setup()

    return {
        "A_q": _A_in["q"],
        "A_k": _A_in["k"],
        "A_v": _A_in["v"],
        "A_shift_k": _A_in["shift_k"],
        "A_ssm_k": _A_in["ssm_k"],
        "A_ssm_D": _A_in["ssm_D"],
        "B_x": _B_in["x"],
        "B_w_gate": _B_in["w_gate"],
        "B_w_up": _B_in["w_up"],
        "B_w_down": _B_in["w_down"],
    }

def reference(A_q, A_k, A_v, A_shift_k, A_ssm_k, A_ssm_D, B_x, B_w_gate, B_w_up, B_w_down):
    def _A_ref(q, k, v, shift_k, ssm_k, ssm_D):
        B, S, D = q.shape
        ks = shift_k.shape[-1]
        k_pad = _pad(k, ((0, 0), (ks - 1, 0), (0, 0)))
        k_shift = torch.zeros_like(k)
        for t in range(ks):
            k_shift = k_shift + k_pad[:, t:t + S, :] * shift_k[:, ks - 1 - t][None, None, :]
        kv = k_shift * v
        L = 2 * S
        kv_pad = _pad(kv, ((0, 0), (0, S), (0, 0)))
        kf_pad = _pad(ssm_k, ((0, 0), (0, S)))
        kv_f = (lambda x, axes=(-2,-1): torch.fft.rfft2(x.float(), dim=axes))(kv_pad[:, None, :, :], axes=(1, 2))
        kf_f = (lambda x, axes=(-2,-1): torch.fft.rfft2(x.float(), dim=axes))(kf_pad[:, None, :], axes=(1, 2))
        kf_f = (lambda x, *d: x.permute(*d))(kf_f, 1, 2, 0)
        y_f = kv_f * kf_f[None, :, :, :]
        y = (lambda x, s, axes=(-2,-1): torch.fft.irfft2(x, s=s, dim=axes).to(torch.bfloat16))(y_f, (1, L), axes=(1, 2))[:, 0, :S, :]
        y = y + kv * ssm_D[None, None, :]
        return q * y

    def _B_ref(x, w_gate, w_up, w_down):
        g = torch.einsum("bsd,df->bsf", x, w_gate)
        u = torch.einsum("bsd,df->bsf", x, w_up)
        h = _sigmoid(g) * u
        return torch.einsum("bsf,fd->bsd", h, w_down)

    x = A_q
    h = x + _A_ref(_layernorm(x, axis=-1), A_k, A_v, A_shift_k, A_ssm_k, A_ssm_D)
    h2 = h + _B_ref(_layernorm(h, axis=-1), B_w_gate, B_w_up, B_w_down)
    return h2
```

```python
import re

REG_RE = re.compile(r'\b([vas])\[(\d+):(\d+)\]|\b([vas])(\d+)\b|\b(vcc_lo|vcc_hi|vcc|exec|m0|scc)\b')

TRANS = ('v_exp_f32', 'v_log_f32', 'v_rcp_f32', 'v_rsq_f32', 'v_sqrt_f32', 'v_sin_f32', 'v_cos_f32')
SALU_NODEF = ('s_cmp', 's_cbranch', 's_branch', 's_waitcnt', 's_barrier', 's_nop', 's_sleep', 's_setprio',
              's_endpgm', 's_bitcmp')
SALU_NOSCC = ('s_mov', 's_cselect', 's_mul_i32', 's_mul_hi', 's_getreg', 's_getpc', 's_movk', 's_load', 's_memtime',
              's_memrealtime', 's_brev', 's_bfm', 's_cmov')


def regs_of(tok):
    out = []
    for m in REG_RE.finditer(tok):
        if m.group(1):
            out += [(m.group(1), i) for i in range(int(m.group(2)), int(m.group(3)) + 1)]
        elif m.group(4):
            out.append((m.group(4), int(m.group(5))))
        else:
            n = m.group(6)
            if n.startswith('vcc'):
                out += [('s', 106), ('s', 107)]
            elif n == 'exec':
                out += [('x', 0)]
            elif n == 'm0':
                out += [('m', 0)]
            else:
                out += [('c', 0)]
    return out


def split_ops(s):
    ops, depth, cur = [], 0, ''
    for ch in s:
        if ch in '[(':
            depth += 1
        if ch in '])':
            depth -= 1
        if ch == ',' and depth == 0:
            ops.append(cur.strip())
            cur = ''
        else:
            cur += ch
    if cur.strip():
        ops.append(cur.strip())
    return ops


class Ins:
    __slots__ = ('text', 'op', 'kind', 'defs', 'uses', 'token', 'arm', 'mf', 'dpp', 'wide', 'data', 'comment',
                 'srd_uses')

    def __init__(self, text, token=None, arm=None):
        self.text = text
        self.token = token
        self.arm = arm
        self.mf = None
        self.dpp = False
        self.wide = False
        self.data = []
        self.srd_uses = []
        t = text.split(';')[0].strip()
        parts = t.split(None, 1)
        op = parts[0]
        self.op = op
        rest = parts[1] if len(parts) > 1 else ''
        ops = split_ops(rest)
        R = [regs_of(o) for o in ops]
        allr = [r for x in R for r in x]
        defs, uses = [], []
        if op.endswith(':'):
            kind = 'label'
        elif op.startswith('.'):
            kind = 'dir'
        elif op.startswith('v_mfma'):
            kind = 'mfma'
            defs = R[0]
            uses = R[1] + R[2] + R[3]
            self.mf = dict(D=R[0], A=R[1], B=R[2], C=R[3], passes=(8 if '32x32' in op else 4))
        elif op.startswith('ds_read') or op.startswith('ds_bpermute') or op.startswith('ds_swizzle') or \
                (op.startswith('ds_') and '_rtn' in op):
            kind = 'dsr'
            defs = R[0]
            uses = [r for x in R[1:] for r in x]
        elif op.startswith('ds_'):
            kind = 'dsw'
            uses = allr
        elif op.startswith('buffer_load') or op.startswith('global_load'):
            if ' lds' in (' ' + rest) and op.startswith('buffer_load') or op.startswith('global_load_lds'):
                kind = 'dma'
                uses = allr + [('m', 0)]
            else:
                kind = 'vld'
                defs = R[0]
                uses = [r for x in R[1:] for r in x]
                if 'd16' in op:
                    uses = uses + R[0]
            self.srd_uses = [r for r in uses if r[0] == 's']
        elif op.startswith('buffer_store') or op.startswith('global_store') or op.startswith('buffer_atomic') or \
                op.startswith('global_atomic'):
            kind = 'vst'
            uses = allr
            if op.startswith('buffer'):
                self.data = R[0]
            else:
                self.data = R[1]
            self.wide = ('x3' in op or 'x4' in op)
            self.srd_uses = [r for r in uses if r[0] == 's']
        elif op.startswith('s_load') or op.startswith('s_memtime') or op.startswith('s_memrealtime'):
            kind = 'smem'
            defs = R[0]
            uses = [r for x in R[1:] for r in x]
        elif op.startswith('s_'):
            kind = 'salu'
            if op.startswith(SALU_NODEF):
                uses = allr
                if op.startswith('s_cmp') or op.startswith('s_bitcmp'):
                    defs = [('c', 0)]
                if op.startswith('s_cbranch_scc'):
                    uses = [('c', 0)]
                if op.startswith('s_cbranch_vcc'):
                    uses = [('s', 106), ('s', 107)]
                if op.startswith('s_cbranch_exec'):
                    uses = [('x', 0)]
                if op in ('s_waitcnt', 's_nop', 's_sleep', 's_setprio', 's_branch'):
                    uses = []
            else:
                defs = list(R[0])
                uses = [r for x in R[1:] for r in x]
                if not op.startswith(SALU_NOSCC):
                    defs.append(('c', 0))
                if op.startswith('s_cselect') or op.startswith('s_addc') or op.startswith('s_cmov'):
                    uses.append(('c', 0))
                if 'saveexec' in op:
                    defs.append(('x', 0))
                    uses.append(('x', 0))
                if op.startswith('s_addk') or op.startswith('s_mulk') or op.startswith('s_cmov'):
                    uses += R[0]
        elif op.startswith('v_'):
            kind = 'valu'
            if op.startswith('v_permlane') and 'swap' in op:
                defs = R[0] + R[1]
                uses = R[0] + R[1]
                kind = 'perm'
            elif op.startswith('v_nop'):
                pass
            else:
                defs = list(R[0])
                uses = [r for x in R[1:] for r in x]
                if op.startswith('v_cmpx'):
                    defs.append(('x', 0))
                if op.startswith(('v_fmac', 'v_dot2c', 'v_pk_fmac', 'v_writelane')):
                    uses += R[0]
                if 'row_' in rest or 'quad_perm' in rest or 'wave_' in rest or op.endswith('_dpp'):
                    self.dpp = True
                    uses += R[0]
                if op.startswith(('v_add_co', 'v_sub_co', 'v_addc_co', 'v_subb_co')):
                    defs += R[1]
            if op.split('_e32')[0].split('_e64')[0] in TRANS:
                kind = 'trans'
            if op.startswith('v_dot'):
                kind = 'dot'
        else:
            raise ValueError('unknown instruction: ' + text)
        self.kind = kind
        self.defs = set(defs)
        self.uses = set(uses)

    def is_valu(self):
        return self.kind in ('valu', 'trans', 'dot', 'perm')

    def is_vmem(self):
        return self.kind in ('vld', 'vst', 'dma')


class Wait:
    def __init__(self, tokens=(), vm0=False, lgkm0=False, arm=None):
        self.tokens = set(tokens)
        self.vm0 = vm0
        self.lgkm0 = lgkm0
        self.arm = arm


class Reset:
    def __init__(self, vm=True, lgkm=True):
        self.vm = vm
        self.lgkm = lgkm
        self.arm = None


class Asm:
    def __init__(self):
        self.items = []
        self.arm = None
        self.nreg = 0
        self.nlab = 0

    def __call__(self, text, token=None):
        for line in text.split('\n'):
            line = line.strip()
            if not line or line.startswith(';'):
                continue
            self.items.append(Ins(line, token=token, arm=self.arm))

    def wait(self, *tokens, vm0=False, lgkm0=False):
        self.items.append(Wait(tokens, vm0, lgkm0, self.arm))

    def reset(self, vm=True, lgkm=True):
        self.items.append(Reset(vm, lgkm))

    def label(self, name):
        self.items.append(Ins(name + ':', arm=None))

    def newlabel(self, stem='L'):
        self.nlab += 1
        return '%s_%d' % (stem, self.nlab)

    def begin_arm(self):
        self.nreg += 1
        self.arm = self.nreg

    def end_arm(self):
        self.arm = None

    def capture(self, fn):
        save = self.items
        self.items = []
        fn()
        got = self.items
        self.items = save
        return got

    def extend(self, items):
        self.items.extend(items)

    def finish(self):
        out = []
        vmq = []
        lgq = []

        def count_after(q, idx, arm):
            src = q[idx]['arm']
            n = 0
            for e in q[idx + 1:]:
                if e['arm'] is None or e['arm'] == src or e['arm'] == arm:
                    n += 1
            return n

        def do_wait(vm_idx, lg_idx, arm, force_lg0=False, force_vm0=False):
            nonlocal vmq, lgq
            parts = []
            if force_vm0:
                parts.append('vmcnt(0)')
                if arm is None:
                    vmq = []
                else:
                    vmq = [e for e in vmq if e['arm'] != arm]
            elif vm_idx is not None:
                n = min(count_after(vmq, vm_idx, arm), 63)
                parts.append('vmcnt(%d)' % n)
                if arm is None:
                    vmq = vmq[vm_idx + 1:]
                else:
                    vmq = [e for i, e in enumerate(vmq) if not (i <= vm_idx and e['arm'] == arm)]
            if lg_idx is not None and any(e['smem'] for e in lgq):
                force_lg0 = True
            if force_lg0:
                parts.append('lgkmcnt(0)')
                if arm is None:
                    lgq = []
                else:
                    lgq = [e for e in lgq if e['arm'] != arm]
            elif lg_idx is not None:
                n = min(count_after(lgq, lg_idx, arm), 15)
                parts.append('lgkmcnt(%d)' % n)
                if arm is None:
                    lgq = lgq[lg_idx + 1:]
                else:
                    lgq = [e for i, e in enumerate(lgq) if not (i <= lg_idx and e['arm'] == arm)]
            if parts:
                out.append(Ins('s_waitcnt ' + ' '.join(parts), arm=arm))

        def need_states(c):
            need = 0
            dist = 0
            for p in reversed(out[-40:]):
                if p.kind in ('label', 'dir'):
                    continue
                req = hazard(p, c)
                if req > dist:
                    need = max(need, req - dist)
                if p.arm is None or p.arm == c.arm:
                    if p.op == 's_nop':
                        dist += int(p.text.split()[1]) + 1
                    else:
                        dist += 1
                if dist >= 20:
                    break
            return need

        for it in self.items:
            if isinstance(it, Reset):
                if it.vm:
                    vmq = []
                if it.lgkm:
                    lgq = []
                continue
            if isinstance(it, Wait):
                vi = li = None
                for i, e in enumerate(vmq):
                    if e['token'] in it.tokens:
                        vi = i
                for i, e in enumerate(lgq):
                    if e['token'] in it.tokens:
                        li = i
                do_wait(vi, li, it.arm, force_lg0=it.lgkm0, force_vm0=it.vm0)
                continue
            c = it
            if c.kind in ('label', 'dir'):
                out.append(c)
                continue
            touched = c.defs | c.uses
            vi = li = None
            for i, e in enumerate(vmq):
                if e['defs'] & touched:
                    vi = i
            for i, e in enumerate(lgq):
                if e['defs'] & touched:
                    li = i
            if vi is not None or li is not None:
                do_wait(vi, li, c.arm)
            n = need_states(c)
            while n > 0:
                k = min(n, 16)
                out.append(Ins('s_nop %d' % (k - 1), arm=c.arm))
                n -= k
            out.append(c)
            if c.op == 's_waitcnt':
                m = re.search(r'vmcnt\((\d+)\)', c.text)
                if m and int(m.group(1)) == 0 and c.arm is None:
                    vmq = []
                m = re.search(r'lgkmcnt\((\d+)\)', c.text)
                if m and int(m.group(1)) == 0 and c.arm is None:
                    lgq = []
            if c.is_vmem():
                vmq.append(dict(defs=c.defs, token=c.token, arm=c.arm))
            elif c.kind in ('dsr', 'dsw', 'smem'):
                lgq.append(dict(defs=c.defs, token=c.token, arm=c.arm, smem=(c.kind == 'smem')))
        return out


def vg(rs):
    return {r for r in rs if r[0] in 'va'}


def sg(rs):
    return {r for r in rs if r[0] == 's'}


def hazard(p, c):
    req = 0
    if p.kind == 'mfma':
        D = set(p.mf['D'])
        ps = p.mf['passes']
        long = 8 if ps == 4 else 12
        if c.kind == 'mfma':
            if D & (set(c.mf['A']) | set(c.mf['B'])):
                req = max(req, long)
            if D & set(c.mf['C']):
                if c.mf['C'] != p.mf['D'] or c.mf['passes'] != ps:
                    req = max(req, 6 if ps == 4 else 10)
            elif D & set(c.mf['D']):
                req = max(req, long)
        elif c.is_valu() or c.is_vmem() or c.kind in ('dsr', 'dsw'):
            if D & (c.defs | c.uses):
                req = max(req, long)
            if c.is_valu() and (set(p.mf['C']) & c.defs):
                req = max(req, 3 if ps == 4 else 7)
    if p.is_valu():
        vd = vg(p.defs)
        sd = sg(p.defs)
        if c.kind == 'mfma' and (vd & c.uses):
            req = max(req, 2)
        if c.kind == 'mfma' and ('x', 0) in p.defs:
            req = max(req, 4)
        if c.kind == 'perm' and (vd & c.uses):
            req = max(req, 2)
        if c.dpp and (vd & c.uses):
            req = max(req, 2)
        if c.op.startswith(('v_readfirstlane', 'v_readlane')) and (vd & c.uses):
            req = max(req, 1)
        if p.kind == 'trans' and c.is_valu() and c.kind != 'trans' and (vd & c.uses):
            req = max(req, 1)
        if p.kind == 'trans' and (c.kind == 'trans' or c.is_vmem() or c.kind == 'dsw') and (vd & c.uses):
            req = max(req, 1)
        if p.kind == 'dot' and (vd & (c.uses | c.defs)):
            same = (c.kind == 'dot' and c.op == p.op)
            if same:
                srcs = set()
                ops = split_ops(c.text.split(None, 1)[1])
                for o in ops[1:3]:
                    srcs |= set(regs_of(o))
                if vd & srcs:
                    req = max(req, 3)
            else:
                req = max(req, 3)
        if sd:
            if c.is_vmem() and (sd & set(c.srd_uses)):
                req = max(req, 5)
            if c.is_valu() and (sd & c.uses):
                req = max(req, 4 if c.op.startswith(('v_readlane', 'v_writelane')) else 2)
        if ('x', 0) in p.defs and (c.dpp or c.kind == 'perm' or c.op.startswith('v_read')):
            req = max(req, 5)
        if 'sdwa' in p.op or 'op_sel' in p.text:
            if c.is_valu() and (vd & (c.uses | c.defs)) and not p.op.startswith('v_pk'):
                req = max(req, 1)
    if p.kind == 'vst' and p.wide:
        dd = set(p.data)
        if c.is_valu() and (dd & c.defs):
            req = max(req, 2)
        elif dd & c.defs:
            req = max(req, 1)
    if p.kind == 'salu' and ('m', 0) in p.defs and c.kind == 'dma':
        req = max(req, 1)
    if p.kind == 'salu' and ('x', 0) in p.defs and (c.dpp):
        req = max(req, 1)
    return req


def render(ins_list):
    lines = []
    for i in ins_list:
        if i.kind == 'label':
            lines.append(i.text)
        else:
            lines.append('    ' + i.text)
    return '\n'.join(lines) + '\n'


def interleave(main, fillers, start=0, per=2, is_anchor=lambda i: isinstance(i, Ins) and i.kind == 'mfma'):
    out = []
    f = list(fillers)
    k = 0
    credit = 0.0
    for it in main:
        out.append(it)
        if is_anchor(it):
            if k >= start:
                credit += per
                while credit >= 1.0 and f:
                    x = f.pop(0)
                    out.append(x)
                    if isinstance(x, Ins):
                        credit -= 2.0 if x.kind == 'trans' else 1.0
            k += 1
    out.extend(f)
    return out
```

```python
import sys, os
sys.path.insert(0, os.path.dirname(os.path.abspath(__file__)))
from asmlib import *

NAME = 'sequential_preLN__ssm_conv_h3__glu_gated_glu__prompt'

WS_EPOCH = 0
WS_ST = 0x1000
WS_F3 = 0x6000
WS_CNT = 0x8000
WS_STAMP = 0x20000
WS_UX = 0x100000
WS_HT = 0x900000
WS_HH = 0xB00000
HH_PITCH = 43 * 1024
WS_SIZE = 0x1100000

SLOT = 12352
UPOFF = 6160
MB = 123520
KIMG = MB
KCH, KODD = 8320, 4160
XIMG = MB
STIMG = MB + 8192
UIMG = 140160
UCH = 4608
RED = 149376
XCCF = 157568
C15 = 131072
H0, H1 = 0, 65536
MISC = 131072
SX = MISC + 3 * 8192 + 4096
LDS_BYTES = 163840

sW, sG, sJ, sT, sTn = 's3', 's4', 's5', 's6', 's7'
SX_, SK, SV, SKK, SW1, SWD, SOUT, SWS, SSH, SDBG = ['s[%d:%d]' % (i, i + 3) for i in range(8, 48, 4)]
s4096, sXCC, sD, sEP = 's54', 's55', 's56', 's57'
sFAST = 's58'
sSPIN = 's59'
sA, sB, sC, sDd = 's60', 's61', 's62', 's63'
sCB, sRHO = 's64', 's65'
sM = 's[66:67]'
STAMP0 = 68

SPIN_LIMIT = 1 << 17


def v(i, n=1):
    return 'v%d' % i if n == 1 else 'v[%d:%d]' % (i, i + n - 1)


def a(i, n=1):
    return 'a%d' % i if n == 1 else 'a[%d:%d]' % (i, i + n - 1)


class Gen:
    def __init__(self, stop=None, stamps=False):
        self.A = Asm()
        self.stop = stop
        self.stamps = stamps
        self.nst = 0
        self.stamp_names = []

    def stamp(self, name):
        if not self.stamps:
            return
        assert self.nst < 16
        i = STAMP0 + 2 * self.nst
        self.A('s_memtime s[%d:%d]' % (i, i + 1))
        self.stamp_names.append(name)
        self.nst += 1

    def barrier(self):
        self.A.wait(lgkm0=True)
        self.A('s_barrier')

    def spin_tail(self, loop, code):
        A = self.A
        A('s_add_u32 %s, %s, 1' % (sSPIN, sSPIN))
        A('s_cmp_lt_u32 %s, %d' % (sSPIN, SPIN_LIMIT))
        A('s_cbranch_scc1 %s' % loop)
        A('s_movk_i32 %s, %d' % (sA, code))
        A('s_branch L_timeout')

    def entry(self):
        A = self.A
        A('s_cmp_ge_u32 s2, 256')
        A('s_cbranch_scc1 L_end')
        for reg, off in ((12, 8), (16, 16), (40, 24), (36, 96), (8, 0), (20, 32), (50, 40), (24, 56), (48, 64),
                         (28, 72), (32, 80), (44, 88)):
            A('s_load_dwordx2 s[%d:%d], s[0:1], %d' % (reg, reg + 1, off))
        self.stamp('start')
        A('v_and_b32 v1, 63, v0')
        A('v_lshrrev_b32 v2, 6, v0')
        A('s_and_b32 %s, s2, 7' % sG)
        A('s_lshr_b32 %s, s2, 3' % sJ)
        A('v_readfirstlane_b32 %s, v2' % sW)
        for srd, size in ((8, 2097152), (12, 2097152), (16, 2097152), (20, 2097152), (24, 1409024), (28, 1409024),
                          (32, 2097152), (36, WS_SIZE), (40, 4096), (44, 256)):
            A('s_mov_b32 s%d, %d' % (srd + 2, size))
            A('s_mov_b32 s%d, 0x20000' % (srd + 3))
        A('s_movk_i32 %s, 4096' % s4096)
        A('s_getreg_b32 %s, hwreg(HW_REG_XCC_ID, 0, 3)' % sXCC)
        A('s_getpc_b64 s[52:53]')
        A.label('L_pc')
        A('s_mov_b32 %s, 0' % sSPIN)
        A('s_lshr_b32 %s, %s, 1' % (sCB, sJ))
        A('s_and_b32 %s, %s, 1' % (sRHO, sJ))
        A('v_and_b32 v2, 7, v1')
        A('v_lshrrev_b32 v3, 3, v1')
        A('s_lshl_b32 %s, %s, 7' % (sA, sG))
        A('s_lshl_b32 %s, %s, 5' % (sB, sW))
        A('s_add_u32 %s, %s, %s' % (sA, sA, sB))
        A('v_lshl_add_u32 v4, v2, 2, %s' % sA)
        A('s_lshl_b32 %s, %s, 16' % (sB, sJ))
        A('v_lshl_add_u32 v5, v3, 13, %s' % sB)
        A('v_add_u32 v5, v5, v4')
        A('v_add_u32 v6, -3072, v5')
        A('v_lshlrev_b32 v4, 2, v4')

    def p0_loads(self):
        A = self.A
        self.KR, self.VR, self.SH = 32, 44, 52
        self.XG = 56
        self.XROW = 72
        self.KW = 80
        A('v_mov_b32 v7, 0')
        A('s_lshl_b32 %s, s2, 7' % sA)
        A('s_add_u32 %s, %s, %d' % (sA, sA, WS_CNT))
        A('v_mov_b32 v8, %s' % sA)
        A('s_waitcnt lgkmcnt(0)')
        A('s_load_dword %s, s[36:37], %d' % (sEP, WS_EPOCH))
        A('s_mov_b64 %s, exec' % sM)
        A('s_mov_b64 exec, 1')
        A('buffer_store_dword v7, v8, %s, 0 offen sc1' % SWS)
        A('s_mov_b64 exec, %s' % sM)
        A('buffer_load_dwordx4 %s, v4, %s, 0 offen' % (v(self.SH, 4), SSH))
        for i in range(3):
            A('buffer_load_dword %s, v6, %s, 0 offen offset:%d' % (v(self.KR + i), SK, 1024 * i))
        for i in range(8):
            A('buffer_load_dword %s, v5, %s, %s offen offset:%d' % (
                v(self.KR + 3 + i), SK, s4096 if i >= 4 else '0', 1024 * (i & 3)))
        for i in range(8):
            A('buffer_load_dword %s, v5, %s, %s offen offset:%d' % (
                v(self.VR + i), SV, s4096 if i >= 4 else '0', 1024 * (i & 3)))
        A('s_lshl_b32 %s, %s, 5' % (sB, sG))
        A('s_add_u32 %s, %s, %s' % (sB, sB, sJ))
        A('s_lshl_b32 %s, %s, 2' % (sC, sB))
        A('s_load_dword %s, s[50:51], %s' % (sD, sC))
        A('s_lshl_b32 %s, %s, 13' % (sC, sB))
        A('v_lshl_add_u32 v7, v0, 4, %s' % sC)
        for c in range(2):
            for wn in range(2):
                A('buffer_load_dwordx4 %s, v7, %s, %s offen offset:%d' % (
                    v(self.KW + 8 * c + 4 * wn, 4), SKK, s4096 if c else '0', 4 * wn))
        for i in range(8):
            A('buffer_load_dword %s, v5, %s, %s offen offset:%d' % (
                v(self.XG + 4 * (i >> 1) + (i & 1)), SX_, s4096 if i >= 4 else '0', 1024 * (i & 3)))
        A('s_lshl_b32 %s, s2, 13' % sC)
        A('s_lshl_b32 %s, %s, 11' % (sDd, sW))
        A('s_add_u32 %s, %s, %s' % (sC, sC, sDd))
        A('v_lshl_add_u32 v8, v1, 4, %s' % sC)
        for i in range(2):
            A('buffer_load_dwordx4 %s, v8, %s, 0 offen offset:%d' % (v(self.XROW + 4 * i, 4), SX_, 1024 * i))
        A('s_lshl_b32 %s, %s, 2' % (sC, sJ))
        A('s_add_u32 %s, %s, %s' % (sC, sC, sW))
        A('s_and_b32 %s, %s, 7' % (sC, sC))
        A('s_lshl_b32 %s, %s, 13' % (sC, sC))
        A('v_lshl_add_u32 v9, v1, 7, %s' % sC)
        A('v_min_u32 v9, CODE_LAST, v9')
        A('global_load_dword v10, v9, s[52:53]')
        A('s_lshl_b32 %s, %s, 5' % (sC, sG))
        A('s_lshl_b32 %s, %s, 3' % (sDd, sW))
        A('s_add_u32 %s, %s, %s' % (sC, sC, sDd))
        A('v_add_u32 v11, %s, v2' % sC)
        A('v_lshlrev_b32 v11, 15, v11')
        A('s_lshl_b32 %s, %s, 10' % (sC, sJ))
        A('s_add_u32 %s, %s, %d' % (sC, sC, WS_UX))
        A('v_lshl_add_u32 v12, v3, 4, %s' % sC)
        A('v_add_u32 v11, v11, v12')
        A('v_lshrrev_b32 v14, 3, v0')
        A('v_and_b32 v15, 7, v0')
        A('v_lshlrev_b32 v15, 4, v15')
        A('s_lshl_b32 %s, %s, 15' % (sC, sB))
        A('s_add_u32 %s, %s, %d' % (sC, sC, WS_UX))
        A('v_lshl_add_u32 v12, v14, 10, v15')
        A('v_add_u32 v12, %s, v12' % sC)
        A('v_lshl_add_u32 v13, v14, 9, v15')
        A('v_add_u32 v13, %d, v13' % WS_ST)
        A('s_cmp_ge_u32 %s, 2' % sW)
        A('s_cselect_b32 s24, s48, s24')
        A('s_cselect_b32 s25, s49, s25')
        for i in range(3):
            A('v_add_u32 v19, %d, v1' % (64 * i))
            A('v_mul_u32_u24 v20, 5462, v19')
            A('v_lshrrev_b32 v20, 16, v20')
            A('v_mul_u32_u24 v21, 12, v20')
            A('v_sub_u32 v21, v19, v21')
            A('v_bfe_u32 v22, v20, 2, 1')
            A('v_lshlrev_b32 v22, 1, v22')
            A('v_sub_u32 v21, v21, v22')
            A('v_add_u32 v22, 12, v21')
            A('v_min_u32 v21, v21, v22')
            A('v_mul_u32_u24 v20, 2752, v20')
            A('v_lshl_add_u32 %s, v21, 4, v20' % v(16 + i))
        A('s_and_b32 %s, %s, 1' % (sC, sW))
        A('s_mul_i32 %s, %s, %d' % (sC, sC, 16 * 2752))
        A('s_mul_i32 %s, %s, 192' % (sDd, sCB))
        A('s_add_u32 %s, %s, %s' % (sC, sC, sDd))
        for i in range(3):
            A('v_add_u32 %s, %s, %s' % (v(16 + i), sC, v(16 + i)))
        A('v_mov_b32 v20, 0')
        A('v_mov_b32 v21, 0')
        A('v_mov_b32 v22, 0')
        A('v_mov_b32 v23, 0')
        A('v_lshlrev_b32 v19, 4, v1')
        A('v_and_b32 v19, 0x1f0, v19')
        A('v_lshrrev_b32 v24, 5, v1')
        A('v_mul_u32_u24 v24, %d, v24' % UCH)
        A('v_add_u32 v19, v19, v24')
        A('v_add_u32 v19, %d, v19' % UIMG)
        A('ds_write_b128 v19, v[20:23]')

    def w1_dma(self, chunk, ldsbase, token):
        A = self.A
        A('s_mov_b32 %s, %d' % (sDd, chunk * 32 * 2752))
        for i in range(3):
            A('s_add_u32 m0, s48, %d' % (ldsbase + 1024 * i))
            A('buffer_load_dwordx4 %s, %s, %s offen lds' % (v(16 + i), SW1, sDd), token=token)

    def w1_round(self, chunks, bases, token):
        for c, b in zip(chunks, bases):
            self.w1_dma(c, b, token)

    def w1_setup(self):
        A = self.A
        A('s_lshr_b32 %s, %s, 1' % (sA, sW))
        A('s_mul_i32 %s, %s, %d' % (sA, sA, UPOFF))
        A('s_and_b32 %s, %s, 1' % (sB, sW))
        A('s_mul_i32 %s, %s, 3072' % (sB, sB))
        A('s_add_u32 s48, %s, %s' % (sA, sB))

    def p0_compute(self):
        A = self.A
        KF, VF, SF, R, UG = 96, 118, 134, 142, 160
        A('s_waitcnt lgkmcnt(0)')
        A('s_mul_i32 %s, %s, 0x9E3779B1' % (sT, sEP))
        A('s_add_u32 %s, %s, 0x85EBCA6B' % (sT, sT))
        A('s_not_b32 %s, %s' % (sTn, sT))
        for i in range(4):
            for G in (UG, self.XG):
                A('v_mov_b32 %s, %s' % (v(G + 4 * i + 2), sT))
                A('v_mov_b32 %s, %s' % (v(G + 4 * i + 3), sTn))
        for jx in range(4):
            for c in range(2):
                src = v(self.SH + 2 * c + (jx >> 1))
                if jx & 1:
                    A('v_and_b32 %s, 0xffff0000, %s' % (v(SF + 2 * jx + c), src))
                else:
                    A('v_lshlrev_b32 %s, 16, %s' % (v(SF + 2 * jx + c), src))
        for i in range(11):
            A('v_lshlrev_b32 %s, 16, %s' % (v(KF + 2 * i), v(self.KR + i)))
            A('v_and_b32 %s, 0xffff0000, %s' % (v(KF + 2 * i + 1), v(self.KR + i)))
        for step, jx in enumerate((3, 2, 1, 0)):
            for t in range(8):
                if step == 0:
                    A('v_pk_mul_f32 %s, %s, %s' % (v(R + 2 * t, 2), v(KF + 2 * t, 2), v(SF + 2 * jx, 2)))
                else:
                    A('v_pk_fma_f32 %s, %s, %s, %s' % (v(R + 2 * t, 2), v(KF + 2 * (t + step), 2), v(SF + 2 * jx, 2),
                                                       v(R + 2 * t, 2)))
        for t in range(8):
            A('v_lshlrev_b32 %s, 16, %s' % (v(VF + 2 * t), v(self.VR + t)))
            A('v_and_b32 %s, 0xffff0000, %s' % (v(VF + 2 * t + 1), v(self.VR + t)))
        for t in range(8):
            A('v_pk_mul_f32 %s, %s, %s' % (v(R + 2 * t, 2), v(R + 2 * t, 2), v(VF + 2 * t, 2)))
        for c in range(2):
            for k in range(4):
                A('v_cvt_pk_bf16_f32 %s, %s, %s' % (v(UG + 8 * c + 4 * (k >> 1) + (k & 1)),
                                                    v(R + 2 * (7 - 2 * k) + c), v(R + 2 * (6 - 2 * k) + c)))
            for h in range(2):
                pl = 2 * c + h
                A('buffer_store_dwordx4 %s, v11, %s, 0 offen offset:%d sc1' % (v(UG + 4 * pl, 4), SWS, 128 * pl))
        self.stamp('u_stored')
        for i in range(4):
            A('buffer_store_dwordx4 %s, v11, %s, 0 offen offset:%d sc1' % (v(self.XG + 4 * i, 4), SWS, 128 * (4 + i)))

    def k_image(self):
        A = self.A
        O = 96
        A('v_lshlrev_b32 v19, 4, v0')
        A('v_add_u32 v19, %d, v19' % (KIMG + 32))
        for c in range(2):
            w0, w1 = self.KW + 8 * c, self.KW + 8 * c + 4
            for k in range(4):
                A('v_alignbit_b32 %s, %s, %s, 16' % (v(O + 4 * c + k), v(w1 + k), v(w0 + k)))
            A('ds_write_b128 v19, %s offset:%d' % (v(w0, 4), KCH * c))
            A('ds_write_b128 v19, %s offset:%d' % (v(O + 4 * c, 4), KCH * c + KODD))
        A('v_mov_b32 v104, 0')
        A('v_mov_b32 v105, 0')
        A('v_mov_b32 v106, 0')
        A('v_mov_b32 v108, 0')
        A('v_mov_b32 v109, 0')
        A('v_mov_b32 v110, 0')
        A('v_lshlrev_b32 v107, 16, %s' % v(self.KW))
        A('v_lshlrev_b32 v111, 16, %s' % v(self.KW + 8))
        A('v_cmp_eq_u32 vcc, 0, v0')
        A('s_and_saveexec_b64 %s, vcc' % sM)
        lab = A.newlabel('L_kp')
        A('s_cbranch_execz %s' % lab)
        A.begin_arm()
        A('v_mov_b32 v24, %d' % KIMG)
        for c in range(2):
            A('ds_write_b128 v24, v[20:23] offset:%d' % (KCH * c))
            A('ds_write_b128 v24, v[20:23] offset:%d' % (KCH * c + 16))
            A('ds_write_b128 v24, v[20:23] offset:%d' % (KCH * c + KODD))
            A('ds_write_b128 v24, %s offset:%d' % (v(104 + 4 * c, 4), KCH * c + KODD + 16))
        A.end_arm()
        A.label(lab)
        A('s_mov_b64 exec, %s' % sM)

    def x_stats(self):
        A = self.A
        S = 112
        for i in range(4):
            A('v_mov_b32 %s, 0' % v(S + i))
        A('s_mov_b32 %s, 0x3f803f80' % sA)
        for k in range(4):
            for r in range(2):
                x = v(self.XROW + 4 * r + k)
                A('v_dot2c_f32_bf16 %s, %s, %s' % (v(S + 2 * r), sA, x))
                A('v_dot2c_f32_bf16 %s, %s, %s' % (v(S + 2 * r + 1), x, x))
        for ctl in ('row_shr:1 row_mask:0xf bank_mask:0xf bound_ctrl:0', 'row_shr:2 row_mask:0xf bank_mask:0xf bound_ctrl:0',
                    'row_shr:4 row_mask:0xf bank_mask:0xf bound_ctrl:0', 'row_shr:8 row_mask:0xf bank_mask:0xf bound_ctrl:0',
                    'row_bcast:15 row_mask:0xa bank_mask:0xf', 'row_bcast:31 row_mask:0xc bank_mask:0xf'):
            for i in range(4):
                A('v_add_f32_dpp %s, %s, %s %s' % (v(S + i), v(S + i), v(S + i), ctl))
        self.ln_scalars(S, S + 2, 116)
        A('v_cvt_pk_bf16_f32 v124, %s, v118' % v(S))
        A('v_cvt_pk_bf16_f32 v125, %s, v119' % v(S + 2))
        A('v_mov_b32 v126, %s' % sT)
        A('s_xor_b32 %s, %s, %s' % (sA, sTn, sXCC))
        A('v_mov_b32 v127, %s' % sA)
        A('s_lshl_b32 %s, %s, 9' % (sA, sJ))
        A('s_lshl_b32 %s, %s, 7' % (sB, sW))
        A('s_add_u32 %s, %s, %s' % (sA, sA, sB))
        A('s_lshl_b32 %s, %s, 4' % (sB, sG))
        A('s_add_u32 %s, %s, %s' % (sA, sA, sB))
        A('s_add_u32 %s, %s, %d' % (sA, sA, WS_ST))
        A('v_mov_b32 v116, %s' % sA)
        A('s_mov_b64 %s, exec' % sM)
        A('s_lshl_b64 exec, 1, 63')
        A('buffer_store_dwordx4 v[124:127], v116, %s, 0 offen sc1' % SWS)
        A('s_mov_b64 exec, %s' % sM)

    def ln_scalars(self, r0, r1, t):
        A = self.A
        A('s_mov_b32 %s, 0x3b000000' % sA)
        for r in (r0, r1):
            A('v_mul_f32 %s, %s, %s' % (v(r), sA, v(r)))
            A('v_mul_f32 %s, %s, %s' % (v(r + 1), sA, v(r + 1)))
        for r in (r0, r1):
            A('v_fma_f32 %s, -%s, %s, %s' % (v(r + 1), v(r), v(r), v(r + 1)))
        for r in (r0, r1):
            A('v_max_f32 %s, 0, %s' % (v(r + 1), v(r + 1)))
        A('v_cvt_pk_bf16_f32 %s, %s, %s' % (v(t), v(r0 + 1), v(r1 + 1)))
        A('s_mov_b32 %s, 0x3727c5ac' % sA)
        A('v_lshlrev_b32 %s, 16, %s' % (v(t + 2), v(t)))
        A('v_and_b32 %s, 0xffff0000, %s' % (v(t + 3), v(t)))
        A('v_add_f32 %s, %s, %s' % (v(t + 2), sA, v(t + 2)))
        A('v_add_f32 %s, %s, %s' % (v(t + 3), sA, v(t + 3)))
        A('v_cvt_pk_bf16_f32 %s, %s, %s' % (v(t), v(t + 2), v(t + 3)))
        A('v_lshlrev_b32 %s, 16, %s' % (v(t + 2), v(t)))
        A('v_and_b32 %s, 0xffff0000, %s' % (v(t + 3), v(t)))
        A('v_sqrt_f32 %s, %s' % (v(t + 2), v(t + 2)))
        A('v_sqrt_f32 %s, %s' % (v(t + 3), v(t + 3)))

    KFR = 128
    CACC = 32
    BR = 64
    NBR = 6

    def conv_addr(self):
        A = self.A
        A('v_and_b32 v2, 15, v1')
        A('v_lshrrev_b32 v3, 4, v1')
        A('s_lshr_b32 %s, %s, 1' % (sA, sW))
        A('s_and_b32 %s, %s, 1' % (sB, sW))
        A('v_lshrrev_b32 v4, 1, v3')
        A('v_and_b32 v5, 1, v3')
        A('v_lshl_add_u32 v6, v4, 4, v2')
        A('v_lshlrev_b32 v7, 3, v5')
        A('v_sub_u32 v6, v6, v7')
        A('s_lshl_b32 %s, %s, 5' % (sC, sB))
        A('s_add_u32 %s, %s, 9' % (sC, sC))
        A('v_add_u32 v6, %s, v6' % sC)
        A('v_and_b32 v7, 1, v6')
        A('v_and_b32 v6, -2, v6')
        A('v_lshlrev_b32 v6, 1, v6')
        A('v_mul_u32_u24 v7, %d, v7' % KODD)
        A('s_mul_i32 %s, %s, %d' % (sC, sA, KCH))
        A('s_add_u32 %s, %s, %d' % (sC, sC, KIMG))
        A('v_add3_u32 v24, v6, v7, %s' % sC)
        A('v_sub_u32 v6, v2, v4')
        A('v_lshlrev_b32 v6, 5, v6')
        A('v_lshl_add_u32 v6, v5, 4, v6')
        A('s_mul_i32 %s, %s, %d' % (sC, sA, UCH))
        A('s_lshl_b32 %s, %s, 6' % (sDd, sB))
        A('s_sub_u32 %s, %s, %s' % (sC, sC, sDd))
        A('s_add_u32 %s, %s, %d' % (sC, sC, UIMG + 512 - 384))
        A('v_add_u32 v25, %s, v6' % sC)
        A('v_lshlrev_b32 v26, 4, v0')
        A('v_add_u32 v26, %d, v26' % (UIMG + 512))
        A('v_lshlrev_b32 v27, 5, v0')
        A('v_add_u32 v27, %d, v27' % XIMG)
        A('v_lshlrev_b32 v6, 4, v2')
        A('v_lshl_add_u32 v6, v3, 2, v6')
        A('s_lshl_b32 %s, %s, 9' % (sC, sB))
        A('v_add_u32 v6, %s, v6' % sC)
        A('v_lshlrev_b32 v28, 2, v6')
        A('v_add_u32 v28, %d, v28' % XIMG)
        A('v_xor_b32 v7, 4, v6')
        A('v_lshlrev_b32 v29, 1, v7')
        A('s_mul_i32 %s, %s, %d' % (sC, sA, UCH))
        A('s_add_u32 %s, %s, %d' % (sC, sC, UIMG + 512))
        A('v_add_u32 v29, %s, v29' % sC)
        A('s_lshl_b32 %s, %s, 11' % (sC, sW))
        A('s_add_u32 %s, %s, %d' % (sC, sC, RED))
        A('v_lshl_add_u32 v30, v1, 4, %s' % sC)
        A('s_xor_b32 %s, %s, 1' % (sC, sW))
        A('s_lshl_b32 %s, %s, 11' % (sC, sC))
        A('s_add_u32 %s, %s, %d' % (sC, sC, RED))
        A('v_lshl_add_u32 v31, v1, 4, %s' % sC)
        A('v_lshlrev_b32 v6, 9, v5')
        A('v_lshl_add_u32 v6, v2, 5, v6')
        A('v_lshl_add_u32 v6, v4, 4, v6')
        A('s_lshl_b32 %s, %s, 5' % (sC, sG))
        A('s_add_u32 %s, %s, %s' % (sC, sC, sJ))
        A('s_lshl_b32 %s, %s, 1' % (sC, sC))
        A('s_add_u32 %s, %s, %s' % (sC, sC, sA))
        A('s_lshl_b32 %s, %s, 12' % (sC, sC))
        A('s_lshl_b32 %s, %s, 10' % (sDd, sB))
        A('s_add_u32 %s, %s, %s' % (sC, sC, sDd))
        A('s_add_u32 %s, %s, %d' % (sC, sC, WS_HT))
        A('v_add_u32 v14, %s, v6' % sC)
        A('s_cmp_eq_u32 %s, 0' % sA)
        A('s_lshl_b32 %s, %s, 16' % (sC, sD))
        A('s_and_b32 %s, %s, 0xffff0000' % (sDd, sD))
        A('s_cmp_eq_u32 %s, 0' % sA)
        A('s_cselect_b32 %s, %s, %s' % (sD, sC, sDd))
        A('s_mov_b32 %s, 0x01000c0c' % sC)
        A('s_mov_b32 %s, 0x03020c0c' % sDd)
        A('s_cselect_b32 s49, %s, %s' % (sC, sDd))
        A('v_bfe_u32 v6, v1, 2, 2')
        A('v_lshl_add_u32 v6, v3, 2, v6')
        A('v_mul_u32_u24 v6, 192, v6')
        A('v_bfe_u32 v7, v1, 1, 1')
        A('v_mul_u32_u24 v7, %d, v7' % UPOFF)
        A('v_add_u32 v6, v6, v7')
        A('v_and_b32 v7, 1, v1')
        A('s_mul_i32 %s, %s, 3' % (sC, sW))
        A('v_lshl_add_u32 v8, v5, 1, %s' % sC)
        A('v_add_u32 v9, v8, v7')
        A('v_subrev_u32 v10, 12, v9')
        A('v_min_u32 v9, v9, v10')
        A('v_lshl_add_u32 v15, v9, 4, v6')
        A('v_add_u32 v9, 2, v8')
        A('v_subrev_u32 v10, 12, v9')
        A('v_min_u32 v9, v9, v10')
        A('v_lshl_add_u32 v19, v9, 4, v6')
        A('v_lshl_add_u32 v19, v7, 3, v19')

    def kfrag_reads(self):
        A = self.A
        for ap in range(32):
            if ap and ap % 8 == 0:
                A('v_add_u32 v24, 1024, v24')
            o = 32 * (ap % 8)
            A('ds_read2_b32 %s, v24 offset0:%d offset1:%d' % (v(self.KFR + 4 * ap, 2), o, o + 1))
            A('ds_read2_b32 %s, v24 offset0:%d offset1:%d' % (v(self.KFR + 4 * ap + 2, 2), o + 2, o + 3))

    def tagcheck(self, G, n, dst, tmp, xcc=None):
        A = self.A
        regs = []
        for i in range(0, n, 2):
            A('v_bitop3_b32 %s, %s, %s, %s bitop3:0x7e' % (v(tmp + len(regs)), v(G + 4 * i + 2), v(G + 4 * i + 6), sT))
            regs.append(tmp + len(regs))
            A('v_bitop3_b32 %s, %s, %s, %s bitop3:0x7e' % (v(tmp + len(regs)), v(G + 4 * i + 3), v(G + 4 * i + 7), sTn))
            if xcc is not None:
                A('v_and_b32 %s, -8, %s' % (v(tmp + len(regs)), v(tmp + len(regs))))
            regs.append(tmp + len(regs))
        assert len(regs) == 4
        A('v_or3_b32 %s, %s, %s, %s' % (v(dst), v(regs[0]), v(regs[1]), v(regs[2])))
        A('v_or_b32 %s, %s, %s' % (v(dst), v(dst), v(regs[3])))

    def poll_u(self):
        A = self.A
        UG = 64
        A.wait(vm0=True)
        A.label('L_pu')
        for pl in range(4):
            A('buffer_load_dwordx4 %s, v12, %s, 0 offen offset:%d sc1' % (v(UG + 4 * pl, 4), SWS, 128 * pl))
        A('s_waitcnt vmcnt(0)')
        self.tagcheck(UG, 4, 84, 80)
        A('v_cmp_ne_u32 vcc, 0, v84')
        A('s_cbranch_vccz L_pu_ok')
        self.spin_tail('L_pu', 1)
        A.label('L_pu_ok')
        A('v_add_u32 v85, %d, v26' % UCH)
        for c in range(2):
            A('ds_write2_b64 %s, %s, %s offset0:0 offset1:1' % ('v85' if c else 'v26', v(UG + 8 * c, 2),
                                                               v(UG + 8 * c + 4, 2)))

    def poll_x(self):
        A = self.A
        XG, SG = 88, 104
        A.wait(vm0=True)
        A.label('L_px')
        for pl in range(4):
            A('buffer_load_dwordx4 %s, v12, %s, 0 offen offset:%d sc1' % (v(XG + 4 * pl, 4), SWS, 128 * (4 + pl)))
        for pl in range(4):
            A('buffer_load_dwordx4 %s, v13, %s, 0 offen offset:%d sc1' % (v(SG + 4 * pl, 4), SWS, 128 * pl))
        A('s_waitcnt vmcnt(0)')
        self.tagcheck(XG, 4, 124, 120)
        self.tagcheck(SG, 4, 125, 120, xcc=True)
        A('v_or_b32 v124, v124, v125')
        A('v_cmp_ne_u32 vcc, 0, v124')
        A('s_cbranch_vccz L_px_ok')
        self.spin_tail('L_px', 2)
        A.label('L_px_ok')
        for h in range(2):
            A('ds_write2_b64 v27, %s, %s offset0:%d offset1:%d' % (v(XG + 8 * h, 2), v(XG + 8 * h + 4, 2), 2 * h, 2 * h + 1))
        A('v_add_u32 v120, 8192, v27')
        for h in range(2):
            A('ds_write2_b64 v120, %s, %s offset0:%d offset1:%d' % (v(SG + 8 * h, 2), v(SG + 8 * h + 4, 2), 2 * h, 2 * h + 1))
        A('s_xor_b32 %s, %s, %s' % (sA, sTn, sXCC))
        A('v_and_b32 v121, 7, v0')
        A('v_cmp_ne_u32 vcc, %s, %s' % (sA, v(SG + 3)))
        A('v_cmp_eq_u32 %s, %s, v121' % (sM, sG))
        A('s_and_b64 vcc, vcc, %s' % sM)
        A('s_cselect_b32 %s, 1, 0' % sA)
        A('v_mov_b32 v122, %s' % sA)
        A('s_lshl_b32 %s, %s, 2' % (sB, sW))
        A('s_add_u32 %s, %s, %d' % (sB, sB, XCCF))
        A('v_mov_b32 v123, %s' % sB)
        A('ds_write_b32 v123, v122')

    def epoch_store(self):
        A = self.A
        lab = A.newlabel('L_ep')
        A('s_or_b32 %s, s2, %s' % (sA, sW))
        A('s_cmp_lg_u32 %s, 0' % sA)
        A('s_cbranch_scc1 %s' % lab)
        A.begin_arm()
        A('v_mov_b32 v120, %s' % sT)
        A('v_mov_b32 v121, %d' % WS_EPOCH)
        A('s_mov_b64 exec, 1')
        A('buffer_store_dword v120, v121, %s, 0 offen sc1' % SWS)
        A('s_mov_b64 exec, -1')
        A.end_arm()
        A.label(lab)
        A('v_mov_b32 v120, %d' % XCCF)
        A('ds_read_b128 v[120:123], v120')
        A('v_or3_b32 v120, v120, v121, v122')
        A('v_or_b32 v120, v120, v123')
        A('v_readfirstlane_b32 %s, v120' % sA)
        A('s_xor_b32 %s, %s, 1' % (sFAST, sA))

    def conv_mfmas(self, cts, zs):
        A = self.A
        zs = list(zs)
        seen = set()
        slot = getattr(self, 'bslot', 0)

        def rd(k):
            A('ds_read_b128 %s, v25 offset:%d' % (v(self.BR + 4 * ((slot + k) % self.NBR), 4), 128 * (zs[k] + 3)))
        pre = min(self.NBR - 1, len(zs))
        for k in range(pre):
            rd(k)
        for k, z in enumerate(zs):
            b = v(self.BR + 4 * ((slot + k) % self.NBR), 4)
            first = True
            for ct in cts:
                ap = 4 * ct - z
                if ap < 0:
                    continue
                acc = v(self.CACC + 4 * ct, 4)
                A('v_mfma_f32_16x16x32_bf16 %s, %s, %s, %s' % (acc, v(self.KFR + 4 * ap, 4), b,
                                                                acc if ct in seen else '0'))
                seen.add(ct)
                if first and k + pre < len(zs):
                    rd(k + pre)
                first = False
        self.bslot = (slot + len(zs)) % self.NBR

    EP = 88

    def conv_pre(self, stage):
        A = self.A
        XF, QN, UD, UR, T = 88, 96, 104, 112, 116
        for i in range(2):
            A('ds_read_b128 %s, v28 offset:%d' % (v(XF + 4 * i, 4), 4096 * stage + 1024 * i))
            A('ds_read_b128 %s, v28 offset:%d' % (v(QN + 4 * i, 4), 8192 + 4096 * stage + 1024 * i))
            A('ds_read_b64 %s, v29 offset:%d' % (v(UR + 2 * i, 2), 2048 * stage + 512 * i))
        for e in range(8):
            A('v_perm_b32 %s, %s, %s, s49' % (v(XF + e), v(XF + e), v(XF + e)))
        for e in range(0, 8, 2):
            for k in range(2):
                A('v_lshlrev_b32 %s, 16, %s' % (v(T + k), v(QN + e + k)))
                A('v_and_b32 %s, 0xffff0000, %s' % (v(T + 2 + k), v(QN + e + k)))
            for k in range(2):
                A('v_rcp_f32 %s, %s' % (v(T + 2 + k), v(T + 2 + k)))
                A('v_sub_f32 %s, %s, %s' % (v(T + k), v(XF + e + k), v(T + k)))
            A('v_cvt_pk_bf16_f32 %s, %s, %s' % (v(T + 4), v(T), v(T + 1)))
            A('v_lshlrev_b32 %s, 16, %s' % (v(T), v(T + 4)))
            A('v_and_b32 %s, 0xffff0000, %s' % (v(T + 1), v(T + 4)))
            for k in range(2):
                A('v_mul_f32 %s, %s, %s' % (v(T + k), v(T + k), v(T + 2 + k)))
            A('v_cvt_pk_bf16_f32 %s, %s, %s' % (v(T + 4), v(T), v(T + 1)))
            A('v_lshlrev_b32 %s, 16, %s' % (v(QN + e), v(T + 4)))
            A('v_and_b32 %s, 0xffff0000, %s' % (v(QN + e + 1), v(T + 4)))
        for i in range(2):
            A('v_and_b32 %s, 0xffff0000, %s' % (v(UD + 4 * i + 0), v(UR + 2 * i + 1)))
            A('v_lshlrev_b32 %s, 16, %s' % (v(UD + 4 * i + 1), v(UR + 2 * i + 1)))
            A('v_and_b32 %s, 0xffff0000, %s' % (v(UD + 4 * i + 2), v(UR + 2 * i)))
            A('v_lshlrev_b32 %s, 16, %s' % (v(UD + 4 * i + 3), v(UR + 2 * i)))
        for e in range(8):
            A('v_mul_f32 %s, %s, %s' % (v(UD + e), sD, v(UD + e)))

    def conv_red_write(self, stage):
        A = self.A
        c0 = self.CACC + 16 * stage
        l1, l2 = A.newlabel('L_rw'), A.newlabel('L_rw')
        A('s_bitcmp1_b32 %s, 0' % sW)
        A('s_cbranch_scc1 %s' % l1)
        A.begin_arm()
        for i in range(2):
            A('ds_write_b128 v30, %s offset:%d' % (v(c0 + 8 + 4 * i, 4), 1024 * i))
        for e in range(8):
            A('v_add_f32 %s, %s, %s' % (v(104 + e), v(104 + e), v(c0 + e)))
        A('s_branch %s' % l2)
        A.end_arm()
        A.label(l1)
        A.begin_arm()
        for i in range(2):
            A('ds_write_b128 v30, %s offset:%d' % (v(c0 + 4 * i, 4), 1024 * i))
        for e in range(8):
            A('v_add_f32 %s, %s, %s' % (v(104 + e), v(104 + e), v(c0 + 8 + e)))
        A.end_arm()
        A.label(l2)

    def conv_finish(self, stage):
        A = self.A
        XF, QN, UD, PT, O = 88, 96, 104, 112, 120
        for i in range(2):
            A('ds_read_b128 %s, v31 offset:%d' % (v(PT + 4 * i, 4), 1024 * i))
        for e in range(8):
            A('v_add_f32 %s, %s, %s' % (v(UD + e), v(UD + e), v(PT + e)))
        for e in range(8):
            A('v_fma_f32 %s, %s, %s, %s' % (v(UD + e), v(QN + e), v(UD + e), v(XF + e)))
        for k in range(4):
            A('v_cvt_pk_bf16_f32 %s, %s, %s' % (v(O + k), v(UD + 2 * k), v(UD + 2 * k + 1)))
        A('v_permlane16_swap_b32 %s, %s' % (v(O), v(O + 2)))
        A('v_permlane16_swap_b32 %s, %s' % (v(O + 1), v(O + 3)))
        A('buffer_store_dwordx4 %s, v14, %s, 0 offen offset:%d sc1' % (v(O, 4), SWS, 2048 * stage), token='h%d' % stage)

    def cnt_add(self, stage):
        A = self.A
        lab = A.newlabel('L_ca')
        A('s_cmp_lg_u32 %s, 0' % sW)
        A('s_cbranch_scc1 %s' % lab)
        A.begin_arm()
        A('s_lshr_b32 %s, %s, 4' % (sA, sJ))
        A('s_lshl_b32 %s, %s, 1' % (sB, sG))
        A('s_add_u32 %s, %s, %s' % (sA, sA, sB))
        A('s_lshl_b32 %s, %s, 7' % (sA, sA))
        A('s_add_u32 %s, %s, %d' % (sA, sA, WS_CNT + stage * 128 * 128))
        A('v_lshl_add_u32 v4, v1, 11, %s' % sA)
        A('v_mov_b32 v5, 1')
        A('s_mov_b64 exec, 0xff')
        A('buffer_atomic_add v5, v4, %s, 0 offen sc1' % SWS)
        A('s_mov_b64 exec, -1')
        A.end_arm()
        A.label(lab)

    def w1_tr(self, chunk, base):
        A = self.A
        hi = base >= 61760
        off = base - (61760 if hi else 0)
        if base == C15:
            off = 0
        for c in range(3):
            for hf in range(2):
                if base == C15:
                    reg = 'v22' if c < 2 else 'v23'
                elif hi:
                    reg = 'v20' if c < 2 else 'v21'
                else:
                    reg = 'v15' if c < 2 else 'v19'
                A('ds_read_b64_tr_b16 %s, %s offset:%d' % (a(4 * (3 * chunk + c) + 2 * hf, 2), reg,
                                                           off + 3072 * hf + (8 if c == 1 else 0)))

    def w1_tr_setup(self):
        A = self.A
        A('v_add_u32 v20, 61760, v15')
        A('v_add_u32 v21, 61760, v19')
        A('s_mov_b32 %s, %d' % (sA, C15))
        A('v_add_u32 v22, %s, v15' % sA)
        A('v_add_u32 v23, %s, v19' % sA)

    ACC1 = (32, 80)
    BF = 128
    CS = 160
    ST = 176
    ET = 178
    WDV = 208

    def gemm_addr(self):
        A = self.A
        A('v_lshrrev_b32 v4, 3, v1')
        A('v_and_b32 v5, 7, v1')
        A('v_lshlrev_b32 v6, 1, v3')
        A('v_xor_b32 v6, v5, v6')
        A('v_lshlrev_b32 v6, 4, v6')
        A('v_lshl_add_u32 v6, v4, 12, v6')
        A('s_lshl_b32 %s, %s, 8' % (sA, sG))
        A('s_lshl_b32 %s, %s, 7' % (sB, sRHO))
        A('s_add_u32 %s, %s, %s' % (sA, sA, sB))
        A('s_lshl_b32 %s, %s, 17' % (sB, sW))
        A('s_add_u32 %s, %s, %s' % (sA, sA, sB))
        A('s_add_u32 %s, %s, %d' % (sA, sA, WS_HT))
        A('v_add_u32 v24, %s, v6' % sA)
        A('v_bfe_u32 v6, v1, 2, 2')
        A('v_lshl_add_u32 v7, v3, 2, v6')
        A('v_bfe_u32 v8, v7, 1, 2')
        A('v_and_b32 v9, 3, v1')
        A('v_lshlrev_b32 v9, 3, v9')
        A('v_lshl_add_u32 v9, v7, 7, v9')
        A('v_lshl_add_u32 v25, v8, 5, v9')
        A('v_bfe_u32 v10, v1, 4, 1')
        A('v_lshlrev_b32 v10, 2, v10')
        A('v_xor_b32 v10, v5, v10')
        A('v_lshlrev_b32 v10, 4, v10')
        A('v_lshl_add_u32 v10, v4, 10, v10')
        A('s_mul_i32 %s, %s, %d' % (sA, sW, 352 * 1024))
        A('s_and_b32 %s, %s, 7' % (sB, sJ))
        A('s_lshl_b32 %s, %s, 7' % (sB, sB))
        A('s_add_u32 %s, %s, %s' % (sA, sA, sB))
        A('v_add_u32 v29, %s, v10' % sA)
        A('v_lshl_add_u32 v10, v3, 3, v6')
        A('v_lshlrev_b32 v10, 7, v10')
        A('v_and_b32 v11, 3, v1')
        A('v_bfe_u32 v12, v1, 3, 1')
        A('v_lshl_add_u32 v11, v12, 2, v11')
        A('v_lshl_add_u32 v30, v11, 4, v10')
        A('v_xor_b32 v31, 64, v30')
        A('v_lshrrev_b32 v6, 5, v1')
        A('v_bfe_u32 v7, v1, 4, 1')
        A('s_mul_i32 %s, %s, 3' % (sA, sW))
        A('s_mul_i32 %s, %s, 12' % (sB, sCB))
        A('s_add_u32 %s, %s, %s' % (sA, sA, sB))
        A('s_lshl_b32 %s, %s, 3' % (sB, sG))
        A('s_lshl_b32 %s, %s, 2' % (sC, sRHO))
        A('s_add_u32 %s, %s, %s' % (sB, sB, sC))
        A('s_mul_i32 %s, %s, %d' % (sB, sB, HH_PITCH))
        A('s_add_u32 %s, %s, %d' % (sB, sB, WS_HH))
        A('s_mov_b32 %s, %d' % (sC, HH_PITCH))
        A('v_add_u32 v8, %s, v7' % sA)
        A('v_mul_lo_u32 v9, v6, %s' % sC)
        A('v_lshl_add_u32 v9, v2, 4, v9')
        A('v_add_u32 v9, %s, v9' % sB)
        A('v_lshl_add_u32 v4, v8, 8, v9')
        A('v_cmp_lt_u32 vcc, v8, %s' % self.vconst(10, 172))
        A('v_cndmask_b32 v4, %s, v4, vcc' % self.vconst(11, 0x80000000))
        A('s_add_u32 %s, %s, 2' % (sA, sA))
        A('s_lshl_b32 %s, %s, 1' % (sC, sC))
        A('v_mul_lo_u32 v8, v7, %s' % sC)
        A('v_add_u32 v5, v8, v9')
        A('s_lshl_b32 %s, %s, 8' % (sB, sA))
        A('s_cmp_lt_u32 %s, 172' % sA)
        A('s_cselect_b32 %s, %s, 0x80000000' % (sB, sB))
        A('v_add_u32 v5, %s, v5' % sB)
        A('v_lshrrev_b32 v8, 5, v1')
        A('v_lshl_add_u32 v8, v8, 4, v2')
        A('s_mov_b32 %s, %d' % (sA, SX))
        A('v_lshl_add_u32 v8, v8, 3, %s' % sA)
        A('v_lshl_add_u32 v7, v2, 3, %s' % sA)
        A('s_lshl_b32 %s, %s, 7' % (sB, sW))
        A('v_add_u32 v6, %s, v7' % sB)
        A('s_lshl_b32 %s, %s, 11' % (sA, sXCC))
        A('s_add_u32 %s, %s, %d' % (sA, sA, WS_CNT))
        A('v_lshl_add_u32 v9, v2, 7, %s' % sA)

    def vconst(self, reg, val):
        self.A('v_mov_b32 %s, 0x%x' % (v(reg), val))
        return v(reg)

    def colsum(self):
        A = self.A
        for k in range(4):
            A('v_mov_b32 %s, 0x3f803f80' % v(172 + k))
        for s in range(16):
            for c in range(3):
                d = v(self.CS + 4 * c, 4)
                A('v_mfma_f32_16x16x32_bf16 %s, %s, v[172:175], %s' % (d, a(4 * (3 * s + c), 4), d if s else '0'))

    def poll_cnt(self, stage):
        A = self.A
        loop, ok = 'L_pc%d' % stage, 'L_pc%d_ok' % stage
        A('s_movk_i32 %s, %d' % (sB, stage * 128 * 128))
        A.wait(vm0=True)
        A.label(loop)
        A('buffer_load_dword v10, v9, %s, %s offen sc1' % (SWS, sB))
        A('s_waitcnt vmcnt(0)')
        A('v_cmp_ne_u32 vcc, 16, v10')
        A('s_cbranch_vccz %s' % ok)
        self.spin_tail(loop, 3 + stage)
        A.label(ok)

    def h_dma(self, p):
        A = self.A
        base = H1 if p else H0
        A('s_lshl_b32 %s, %s, 12' % (sC, sW))
        for ck in range(4):
            for i in range(4):
                A('s_add_u32 m0, %s, %d' % (sC, base + 16384 * ck + 1024 * i))
                A('s_mov_b32 %s, %d' % (sDd, (16 * ck + i) * 32768 + 2048 * p))
                A('buffer_load_dwordx4 v24, %s, %s offen sc1 lds' % (SWS, sDd), token='h%d_%d' % (p, ck))

    def wd_dma(self, i, ldsbase, wstride, token):
        A = self.A
        A('s_mul_i32 %s, %s, %d' % (sC, sW, wstride))
        for k in range(4):
            A('s_add_u32 m0, %s, %d' % (sC, ldsbase + 1024 * k))
            A('s_mov_b32 %s, %d' % (sDd, (32 * i + 8 * k) * 1024))
            A('buffer_load_dwordx4 v29, %s, %s offen lds' % (SWD, sDd), token=token)

    def wd_reg(self, i):
        if i < 4:
            return lambda k, n: a(192 + 16 * i + k, n)
        if i >= 9:
            return lambda k, n: v(self.WDV + 16 * (i - 9) + k, n)
        return lambda k, n: a(16 * (i - 4) + k, n)

    def wd_base(self, ldsbase, wstride):
        A = self.A
        A('s_mul_i32 %s, %s, %d' % (sC, sW, wstride))
        A('s_add_u32 %s, %s, %d' % (sC, sC, ldsbase))
        A('v_add_u32 v12, %s, v30' % sC)
        A('v_add_u32 v13, %s, v31' % sC)

    def wd_tr(self, i, off):
        A = self.A
        R = self.wd_reg(i)
        for kap in range(4):
            for hf in range(2):
                A('ds_read_b64_tr_b16 %s, %s offset:%d' % (R(4 * kap + 2 * hf, 2), 'v13' if kap >> 1 else 'v12',
                                                           off + 512 * hf + 8 * (kap & 1)))

    def g1_reads(self, s):
        A = self.A
        for tau in range(4):
            for hf in range(2):
                A('ds_read_b64_tr_b16 %s, %s offset:%d' % (v(self.BF + 16 * (s & 1) + 4 * tau + 2 * hf, 2), v(25 + tau),
                                                           128 * (32 * s + 16 * hf)))

    def g1_stats_ops(self, s):
        A = self.A
        for k in range(4):
            x = v(self.BF + 16 * (s & 1) + k)
            A('v_dot2c_f32_bf16 %s, s100, %s' % (v(self.ST), x))
            A('v_dot2c_f32_bf16 %s, %s, %s' % (v(self.ST + 1), x, x))

    def g1_pass(self, p, hooks=None):
        A = self.A
        hooks = hooks or {}
        acc = self.ACC1[p]
        A('s_mov_b32 s100, 0x3f803f80')
        A('v_mov_b32 %s, 0' % v(self.ST))
        A('v_mov_b32 %s, 0' % v(self.ST + 1))
        for s in range(16):
            if s % 4 == 0:
                if s == 0:
                    A.wait('h%d_0' % p)
                    self.barrier()
                    self.stamp('g1p%d_go' % p)
                    self.g1_reads(0)
            if s + 1 < 16:
                if (s + 1) % 4 == 0:
                    A.wait('h%d_%d' % (p, (s + 1) // 4))
                    A('s_barrier')
                self.g1_reads(s + 1)
            if s in hooks:
                hooks[s]()
            for tau in range(4):
                for c in range(3):
                    d = v(acc + 4 * (3 * tau + c), 4)
                    A('v_mfma_f32_16x16x32_bf16 %s, %s, %s, %s' % (d, a(4 * (3 * s + c), 4),
                                                                    v(self.BF + 16 * (s & 1) + 4 * tau, 4),
                                                                    d if s else '0'))
            self.g1_stats_ops(s)

    def g1_stats_publish(self, p):
        A = self.A
        S, T = self.ST, self.ET
        for sw in ('v_permlane32_swap_b32', 'v_permlane16_swap_b32'):
            for k in range(2):
                A('v_mov_b32 %s, %s' % (v(T + k), v(S + k)))
            for k in range(2):
                A('%s %s, %s' % (sw, v(T + k), v(S + k)))
            for k in range(2):
                A('v_add_f32 %s, %s, %s' % (v(S + k), v(S + k), v(T + k)))
        A('v_mov_b32 %s, %s' % (v(T + 4), v(S)))
        A('v_mov_b32 %s, %s' % (v(T + 5), v(S + 1)))
        self.ln_scalars(S, T + 4, T)
        A('v_cvt_pk_bf16_f32 %s, %s, %s' % (v(T), v(S), v(T + 2)))
        A('v_lshlrev_b32 %s, 16, %s' % (v(T + 4), v(T)))
        A('v_and_b32 %s, 0xffff0000, %s' % (v(T + 5), v(T)))
        A('ds_write_b64 v6, %s offset:%d' % (v(T + 4, 2), 512 * p))

    def g1_epilogue(self, p):
        A = self.A
        acc = self.ACC1[p]
        T = self.ET
        M = T
        SR = T + 8
        RH = T + 12
        O = T + 14
        E = T + 26
        assert O % 2 == 0
        for tau in range(4):
            A('ds_read_b64 %s, %s offset:%d' % (v(M + 2 * tau, 2), v(240 + tau), 512 * p))
        for pr in range(2):
            A('ds_read_b64 %s, %s offset:%d' % (v(SR + 2 * pr, 2), v(244 + pr), 512 * p))
        for pr in range(2):
            A('v_rcp_f32 %s, %s' % (v(RH + pr), v(SR + 2 * pr + 1)))
        A('s_mov_b32 %s, 0xbfb8aa3b' % sA)
        for pr in range(2):
            A('v_mul_f32 %s, %s, %s' % (v(RH + pr), sA, v(RH + pr)))
        for tau in range(4):
            for c in range(3):
                for r in range(4):
                    d = v(acc + 4 * (3 * tau + c) + r)
                    A('v_fma_f32 %s, -%s, %s, %s' % (d, v(M + 2 * tau), v(self.CS + 4 * c + r), d))
        for pr in range(2):
            for c in range(3):
                g0 = acc + 4 * (3 * (2 * pr) + c)
                u0 = acc + 4 * (3 * (2 * pr + 1) + c)
                for r in range(4):
                    A('v_permlane32_swap_b32 %s, %s' % (v(g0 + r), v(u0 + r)))
                for r in range(4):
                    A('v_mul_f32 %s, %s, %s' % (v(g0 + r), v(RH + pr), v(g0 + r)))
                for r in range(4):
                    A('v_exp_f32 %s, %s' % (v(g0 + r), v(g0 + r)))
                for r in range(4):
                    A('v_fma_f32 %s, %s, %s, %s' % (v(g0 + r), v(g0 + r), v(SR + 2 * pr + 1), v(SR + 2 * pr + 1)))
                for r in range(4):
                    A('v_rcp_f32 %s, %s' % (v(g0 + r), v(g0 + r)))
                for r in range(4):
                    A('v_mul_f32 %s, %s, %s' % (v(u0 + r), v(u0 + r), v(g0 + r)))
                dst = (O + 4 * pr + 2 * c) if c < 2 else (O + 8 + 2 * pr)
                for k in range(2):
                    A('v_cvt_pk_bf16_f32 %s, %s, %s' % (v(dst + k), v(u0 + 2 * k), v(u0 + 2 * k + 1)))
        A('v_permlane16_swap_b32 %s, %s' % (v(O + 8), v(O + 10)))
        A('v_permlane16_swap_b32 %s, %s' % (v(O + 9), v(O + 11)))
        l1, l2 = A.newlabel('L_hs'), A.newlabel('L_hs')
        A('s_mov_b32 %s, %d' % (sB, 64 * HH_PITCH * p))
        A('s_cmp_eq_u32 %s, 0' % sFAST)
        A('s_cbranch_scc1 %s' % l1)
        for fl in ('', ' sc1'):
            A.begin_arm()
            A('buffer_store_dwordx4 %s, v246, %s, %s offen%s' % (v(O, 4), SWS, sB, fl))
            A('buffer_store_dwordx4 %s, v247, %s, %s offen%s' % (v(O + 4, 4), SWS, sB, fl))
            A('buffer_store_dwordx4 %s, v248, %s, %s offen%s' % (v(O + 8, 4), SWS, sB, fl))
            if fl == '':
                A('s_branch %s' % l2)
            A.end_arm()
            A.label(l1 if fl == '' else l2)

    def rot_addr(self):
        A = self.A
        for r in range(4):
            A('s_add_u32 %s, %s, %d' % (sA, sW, r))
            A('s_and_b32 %s, %s, 3' % (sA, sA))
            A('s_lshl_b32 s%d, %s, 5' % (50 + r, sA))
        for r in (1, 2, 3, 0):
            A('v_xor_b32 %s, s%d, v25' % (v(25 + r), 50 + r))
        for r in range(4):
            A('s_lshl_b32 %s, s%d, 2' % (sA, 50 + r))
            A('v_add_u32 %s, %s, v7' % (v(240 + r), sA))
        A('v_cmp_gt_u32 vcc, 32, v1')
        for pr in range(2):
            A('v_cndmask_b32 %s, %s, %s, vcc' % (v(244 + pr), v(240 + 2 * pr + 1), v(240 + 2 * pr)))
        for r in range(4):
            A('s_mul_i32 s%d, s%d, %d' % (50 + r, 50 + r, HH_PITCH // 32))
        A('v_lshrrev_b32 v10, 5, v1')
        A('s_mov_b32 %s, %d' % (sA, HH_PITCH))
        A('v_mul_lo_u32 v10, v10, %s' % sA)
        A('v_sub_u32 v4, v4, v10')
        A('v_sub_u32 v5, v5, v10')
        A('v_bfe_u32 v11, v1, 4, 1')
        A('s_lshl_b32 %s, %s, 1' % (sA, sA))
        A('v_mul_lo_u32 v11, v11, %s' % sA)
        A('v_sub_u32 v5, v5, v11')
        for pr in range(2):
            A('v_mov_b32 v10, s%d' % (50 + 2 * pr + 1))
            A('v_mov_b32 v11, s%d' % (50 + 2 * pr))
            A('v_cndmask_b32 %s, v10, v11, vcc' % v(249 + pr))
            A('v_add_u32 %s, v4, %s' % (v(246 + pr), v(249 + pr)))
        A('v_and_b32 v10, 16, v1')
        A('v_cmp_eq_u32 vcc, 0, v10')
        A('v_cndmask_b32 v10, v250, v249, vcc')
        A('v_add_u32 v248, v5, v10')

    def f3_set(self, stage):
        A = self.A
        lab, l1 = A.newlabel('L_f3'), A.newlabel('L_f3')
        A('s_cmp_lg_u32 %s, 0' % sW)
        A('s_cbranch_scc1 %s' % lab)
        A.begin_arm()
        A('s_lshl_b32 %s, %s, 7' % (sA, sG))
        A('s_lshl_b32 %s, %s, 2' % (sB, sJ))
        A('s_add_u32 %s, %s, %s' % (sA, sA, sB))
        A('s_add_u32 %s, %s, %d' % (sA, sA, WS_F3 + 1024 * stage))
        A('v_mov_b32 v10, %s' % sA)
        A('v_mov_b32 v11, %s' % sT)
        A('s_mov_b64 exec, 1')
        A('s_cmp_eq_u32 %s, 0' % sFAST)
        A('s_cbranch_scc1 %s' % l1)
        A('buffer_store_dword v11, v10, %s, 0 offen' % SWS)
        A('s_mov_b64 exec, -1')
        A('s_branch %s' % lab)
        A.label(l1)
        A('buffer_store_dword v11, v10, %s, 0 offen sc1' % SWS)
        A('s_mov_b64 exec, -1')
        A.end_arm()
        A.label(lab)

    ACC2 = 128
    RES = 192

    def hh_reg(self, p, i, tau):
        if p == 0:
            return a(80 + 8 * i + 4 * tau, 4)
        return v(32 + 8 * i + 4 * tau, 4)

    def g2_addr(self):
        A = self.A
        A('v_min_u32 v14, 31, v1')
        A('s_lshl_b32 %s, %s, 7' % (sA, sG))
        A('s_add_u32 %s, %s, %d' % (sA, sA, WS_F3))
        A('v_lshl_add_u32 v14, v14, 2, %s' % sA)
        masks = []
        for w in range(4):
            lo, hi = (11 * w) // 3, min((11 * w + 10) // 3, 14)
            masks.append(sum(1 << (2 * cb) for cb in range(lo, hi + 1)))
        A('s_mov_b32 s101, 0x%x' % masks[0])
        for w in range(1, 4):
            A('s_cmp_eq_u32 %s, %d' % (sW, w))
            A('s_cselect_b32 s101, 0x%x, s101' % masks[w])
        A('s_lshr_b32 %s, %s, 4' % (sA, sJ))
        A('s_lshl_b32 s101, s101, %s' % sA)
        A('s_lshr_b32 %s, %s, 3' % (sA, sJ))
        A('s_lshl_b32 %s, %s, 1' % (sA, sA))
        A('s_lshl_b32 %s, %s, 3' % (sB, sG))
        A('s_add_u32 %s, %s, %s' % (sA, sA, sB))
        A('s_mul_i32 %s, %s, %d' % (sB, sA, HH_PITCH))
        A('s_mul_i32 %s, %s, %d' % (sC, sW, 11 * 1024))
        A('s_add_u32 %s, %s, %s' % (sB, sB, sC))
        A('s_add_u32 %s, %s, %d' % (sB, sB, WS_HH))
        A('v_lshl_add_u32 v15, v1, 4, %s' % sB)
        A('s_lshr_b32 %s, %s, 1' % (sB, sW))
        A('s_add_u32 %s, %s, %s' % (sA, sA, sB))
        A('s_lshl_b32 %s, %s, 4' % (sA, sA))
        A('s_and_b32 %s, %s, 7' % (sB, sJ))
        A('s_lshl_b32 %s, %s, 6' % (sB, sB))
        A('s_and_b32 %s, %s, 1' % (sC, sW))
        A('s_lshl_b32 %s, %s, 5' % (sC, sC))
        A('s_add_u32 %s, %s, %s' % (sB, sB, sC))
        A('v_add_u32 v10, %s, v2' % sA)
        A('v_lshl_add_u32 v11, v3, 3, %s' % sB)
        A('v_lshlrev_b32 v16, 12, v11')
        A('v_lshl_add_u32 v16, v10, 1, v16')
        A('v_add_u32 v16, %d, v16' % WS_HT)
        A('v_lshlrev_b32 v19, 10, v10')
        A('v_lshl_add_u32 v19, v11, 1, v19')
        A('s_lshl_b32 %s, %s, 13' % (sA, sW))
        A('s_add_u32 %s, %s, %d' % (sA, sA, H1))
        A('v_lshl_add_u32 v17, v1, 4, %s' % sA)
        A('s_lshl_b32 %s, %s, 11' % (sA, sW))
        A('s_add_u32 %s, %s, %d' % (sA, sA, H1))
        A('v_lshl_add_u32 v18, v1, 4, %s' % sA)

    def res_loads(self):
        A = self.A
        for e in range(16):
            A('v_mov_b32 %s, 0' % v(self.RES + e))
        for p in range(2):
            for e in range(8):
                A('s_mov_b32 %s, %d' % (sDd, 4096 * e))
                A('buffer_load_short_d16_hi %s, v16, %s, %s offen offset:%d sc1' % (v(self.RES + 8 * p + e), SWS, sDd,
                                                                                   2048 * p))

    def poll_f3(self, p):
        A = self.A
        loop, ok = 'L_pf%d' % p, 'L_pf%d_ok' % p
        A.wait(vm0=True)
        A.label(loop)
        A('buffer_load_dword v10, v14, %s, 0 offen offset:%d sc1' % (SWS, 1024 * p))
        A('s_waitcnt vmcnt(0)')
        A('v_cmp_eq_u32 vcc, %s, v10' % sT)
        A('s_and_b32 %s, vcc_lo, s101' % sA)
        A('s_cmp_eq_u32 %s, s101' % sA)
        A('s_cbranch_scc1 %s' % ok)
        self.spin_tail(loop, 5 + p)
        A.label(ok)

    def hh_loads(self, p):
        A = self.A
        for i in range(11):
            if i == 10:
                lab = A.newlabel('L_hl')
                A('s_cmp_eq_u32 %s, 3' % sW)
                A('s_cbranch_scc1 %s' % lab)
                A.begin_arm()
            for tau in range(2):
                off = 64 * HH_PITCH * p + HH_PITCH * tau + 1024 * i
                A('s_mov_b32 %s, %d' % (sDd, off & ~4095))
                A('buffer_load_dwordx4 %s, v15, %s, %s offen offset:%d sc1' % (self.hh_reg(p, i, tau), SWS, sDd,
                                                                              off & 4095))
            if i == 10:
                A.end_arm()
                A.label(lab)

    def g2_mfmas(self, p):
        A = self.A
        acc = self.ACC2 + 32 * p
        for i in range(11):
            if i == 10:
                lab = A.newlabel('L_gm')
                A('s_cmp_eq_u32 %s, 3' % sW)
                A('s_cbranch_scc1 %s' % lab)
                A.begin_arm()
            R = self.wd_reg(i)
            for tau in range(2):
                for kap in range(4):
                    d = v(acc + 4 * (4 * tau + kap), 4)
                    A('v_mfma_f32_16x16x32_bf16 %s, %s, %s, %s' % (d, R(4 * kap, 4), self.hh_reg(p, i, tau),
                                                                    d if i else '0'))
            if i == 10:
                A.end_arm()
                A.label(lab)

    def g2_finish(self, p):
        A = self.A
        acc = self.ACC2 + 32 * p
        for t in range(8):
            A('ds_write_b128 v17, %s offset:%d' % (v(acc + 4 * t, 4), 32768 * p + 1024 * t))
        self.barrier()
        for w in range(4):
            for k in range(2):
                A('ds_read_b128 %s, v18 offset:%d' % (v(acc + 8 * w + 4 * k, 4), 32768 * p + 8192 * w + 1024 * k))
        for w in range(4):
            for e in range(8):
                A('v_add_f32 %s, %s, %s' % (v(self.RES + 8 * p + e), v(self.RES + 8 * p + e), v(acc + 8 * w + e)))
        for k in range(4):
            A('v_cvt_pk_bf16_f32 %s, %s, %s' % (v(acc + k), v(self.RES + 8 * p + 2 * k), v(self.RES + 8 * p + 2 * k + 1)))
        A('s_mov_b32 %s, %d' % (sDd, 1024 * 1024 * p))
        A('buffer_store_dwordx4 %s, v19, %s, %s offen' % (v(acc, 4), SOUT, sDd))

    def done(self, name):
        if self.stop == name:
            self.A('s_branch L_fin')
            return True
        return False

    def build(self):
        A = self.A
        self.entry()
        self.p0_loads()
        self.w1_setup()
        self.w1_round(range(0, 5), [SLOT * i for i in range(5)], 'w1r1')
        self.p0_compute()
        self.k_image()
        self.x_stats()
        self.conv_addr()
        self.w1_tr_setup()
        self.barrier()
        self.kfrag_reads()
        self.stamp('kfrag')
        self.poll_u()
        self.stamp('u_seen')
        self.barrier()
        self.poll_x()
        self.w1_round(range(5, 10), [SLOT * i for i in range(5, 10)], 'w1r2')
        for c in range(5):
            self.w1_tr(c, SLOT * c)
        self.barrier()
        self.stamp('x_seen')
        self.epoch_store()
        self.conv_mfmas(range(0, 4), range(-3, 13))
        self.conv_pre(0)
        self.conv_red_write(0)
        self.barrier()
        self.conv_finish(0)
        self.w1_round(range(10, 15), [SLOT * i for i in range(5)], 'w1r3')
        self.conv_mfmas(range(4, 8), range(-3, 29))
        A.wait('h0')
        self.barrier()
        self.cnt_add(0)
        for c in range(5, 10):
            self.w1_tr(c, SLOT * c)
        self.conv_pre(1)
        self.conv_red_write(1)
        self.barrier()
        self.conv_finish(1)
        self.stamp('conv_done')
        self.w1_dma(15, C15, 'w1r4')
        self.gemm_addr()
        self.rot_addr()
        for i in range(4):
            self.wd_dma(i, H1 + 4096 * i, 16384, 'wdA')
        A.wait('h1')
        self.barrier()
        self.cnt_add(1)
        if not self.done('conv'):
            A.wait('w1r3', 'w1r4')
            self.barrier()
            for c in range(10, 15):
                self.w1_tr(c, SLOT * (c - 10))
            self.w1_tr(15, C15)
            self.barrier()
            self.wd_dma(9, MISC, 8192, 'wdM')
            lab = A.newlabel('L_wd10')
            A('s_cmp_eq_u32 %s, 3' % sW)
            A('s_cbranch_scc1 %s' % lab)
            A.begin_arm()
            self.wd_dma(10, MISC + 4096, 8192, 'wdM')
            A.end_arm()
            A.label(lab)
            self.colsum()
            self.stamp('w1_ready')
            self.poll_cnt(0)
            self.stamp('cnt0')
            self.h_dma(0)
            self.wd_base(H1, 16384)
            for i in range(4):
                self.wd_tr(i, 4096 * i)
            self.wd_base(MISC, 8192)
            self.wd_tr(9, 0)
            self.wd_tr(10, 4096)

            def mid():
                self.poll_cnt(1)
                self.h_dma(1)
                self.wd_dma(8, MISC, 8192, 'wdM2')
            self.g1_pass(0, hooks={7: mid})
            self.g1_stats_publish(0)
            self.barrier()
            self.stamp('g1p0_done')
            for i in range(4, 8):
                self.wd_dma(i, H0 + 4096 * (i - 4), 16384, 'wdB')
            self.g1_epilogue(0)
            A('s_mov_b32 %s, %d' % (sA, H1))
            for r in range(4):
                A('v_add_u32 %s, %s, %s' % (v(25 + r), sA, v(25 + r)))

            def pub0():
                A.wait(vm0=True)
                A('s_barrier')
                self.f3_set(0)
            self.g1_pass(1, hooks={7: pub0})
            self.g1_stats_publish(1)
            self.barrier()
            self.stamp('g1p1_done')
            self.g1_epilogue(1)
            self.g2_addr()
            A.wait(vm0=True)
            A('s_barrier')
            self.f3_set(1)
            self.stamp('hh_pub')
            if not self.done('g1'):
                self.res_loads()
                self.wd_base(H0, 16384)
                for i in range(4, 8):
                    self.wd_tr(i, 4096 * (i - 4))
                self.wd_base(MISC, 8192)
                self.wd_tr(8, 0)
                self.poll_f3(0)
                self.hh_loads(0)
                self.g2_mfmas(0)
                self.g2_finish(0)
                self.stamp('g2a_done')
                self.poll_f3(1)
                self.hh_loads(1)
                self.g2_mfmas(1)
                self.g2_finish(1)
        A.label('L_fin')
        if self.stamps:
            self.stamp('end')
            A('s_waitcnt lgkmcnt(0)')
            A('s_lshl_b32 %s, s2, 2' % sA)
            A('s_add_u32 %s, %s, %s' % (sA, sA, sW))
            A('s_lshl_b32 %s, %s, 7' % (sA, sA))
            A('s_add_u32 %s, %s, %d' % (sA, sA, WS_STAMP))
            A('s_mov_b64 exec, 1')
            A('v_mov_b32 v4, %s' % sA)
            for i in range(self.nst):
                A('v_mov_b32 v5, s%d' % (STAMP0 + 2 * i))
                A('buffer_store_dword v5, v4, %s, 0 offen offset:%d' % (SWS, 4 * i))
        A.label('L_end')
        A('s_endpgm')
        A.label('L_timeout')
        A('s_mov_b64 exec, 1')
        A('v_mov_b32 v4, %s' % sA)
        A('s_lshl_b32 %s, %s, 2' % (sA, sA))
        A('v_mov_b32 v5, %s' % sA)
        A('buffer_store_dword v4, v5, %s, 0 offen' % SDBG)
        A('s_endpgm')
        A.label('L_code_end')

    def text(self):
        self.build()
        body = render(self.A.finish())
        head = open(os.path.join(os.path.dirname(os.path.abspath(__file__)), '..', 'cdna_kernels', NAME + '.s.ref')).read()
        head = head.split('; Override launch geometry')[0]
        s = head
        s += '; @launch grid=(256,1,1) block=(256,1,1) lds=%d\n' % LDS_BYTES
        s += '.amdgcn_target "amdgcn-amd-amdhsa--gfx950"\n.text\n'
        s += '.set CODE_LAST, (L_code_end - L_pc - 4) & ~3\n'
        s += '.globl %s_kernel\n.p2align 8\n.type %s_kernel,@function\n%s_kernel:\n' % (NAME, NAME, NAME)
        s += body
        s += '''.section .rodata,"a"
.p2align 6
.amdhsa_kernel %s_kernel
  .amdhsa_next_free_vgpr 512
  .amdhsa_next_free_sgpr 102
  .amdhsa_accum_offset 256
  .amdhsa_group_segment_fixed_size 0
  .amdhsa_kernarg_size 104
  .amdhsa_user_sgpr_count 2
  .amdhsa_user_sgpr_kernarg_segment_ptr 1
  .amdhsa_system_sgpr_workgroup_id_x 1
  .amdhsa_float_denorm_mode_32 3
.end_amdhsa_kernel
''' % NAME
        return s


if __name__ == '__main__':
    import argparse
    ap = argparse.ArgumentParser()
    ap.add_argument('-o', default=None)
    ap.add_argument('--stop', default=None)
    ap.add_argument('--stamps', action='store_true')
    args = ap.parse_args()
    g = Gen(stop=args.stop, stamps=args.stamps)
    t = g.text()
    out = args.o or os.path.join(os.path.dirname(os.path.abspath(__file__)), '..', 'cdna_kernels', NAME + '.s')
    open(out, 'w').write(t)
    if args.stamps:
        open(out + '.stamps', 'w').write('\n'.join(g.stamp_names))
    print('wrote', out, len(t), 'bytes')
```

```python
import sys, os
sys.path.insert(0, os.path.dirname(os.path.abspath(__file__)))
from asmlib import *

NAME = 'sequential_preLN__ssm_conv_h3__glu_gated_glu__prompt'

WS_EPOCH = 0
WS_ST = 0x1000
WS_F3 = 0x6000
WS_CNT = 0x8000
WS_STAMP = 0x20000
WS_UX = 0x100000
WS_HT = 0x900000
WS_HH = 0xB00000
HH_PITCH = 43 * 1024
WS_SIZE = 0x1100000

SLOT = 12352
UPOFF = 6160
MB = 123520
KIMG = MB
KCH, KODD = 8320, 4160
XIMG = MB
STIMG = MB + 8192
UIMG = 140160
UCH = 4608
RED = 149376
XCCF = 157568
C15 = 131072
H0, H1 = 0, 65536
MISC = 131072
SX = MISC + 3 * 8192 + 4096
LDS_BYTES = 163840

sW, sG, sJ, sT, sTn = 's3', 's4', 's5', 's6', 's7'
SX_, SK, SV, SKK, SW1, SWD, SOUT, SWS, SSH, SDBG = ['s[%d:%d]' % (i, i + 3) for i in range(8, 48, 4)]
s4096, sXCC, sD, sEP = 's54', 's55', 's56', 's57'
sFAST = 's58'
sSPIN = 's59'
sA, sB, sC, sDd = 's60', 's61', 's62', 's63'
sCB, sRHO = 's64', 's65'
sM = 's[66:67]'
STAMP0 = 68

SPIN_LIMIT = 1 << 17


def v(i, n=1):
    return 'v%d' % i if n == 1 else 'v[%d:%d]' % (i, i + n - 1)


def a(i, n=1):
    return 'a%d' % i if n == 1 else 'a[%d:%d]' % (i, i + n - 1)


class Gen:
    def __init__(self, stop=None, stamps=False):
        self.A = Asm()
        self.stop = stop
        self.stamps = stamps
        self.nst = 0
        self.stamp_names = []

    def stamp(self, name):
        if not self.stamps:
            return
        assert self.nst < 16
        i = STAMP0 + 2 * self.nst
        self.A('s_memtime s[%d:%d]' % (i, i + 1))
        self.stamp_names.append(name)
        self.nst += 1

    def barrier(self):
        self.A.wait(lgkm0=True)
        self.A('s_barrier')

    def spin_tail(self, loop, code):
        A = self.A
        A('s_add_u32 %s, %s, 1' % (sSPIN, sSPIN))
        A('s_cmp_lt_u32 %s, %d' % (sSPIN, SPIN_LIMIT))
        A('s_cbranch_scc1 %s' % loop)
        A('s_movk_i32 %s, %d' % (sA, code))
        A('s_branch L_timeout')

    def entry(self):
        A = self.A
        A('s_cmp_ge_u32 s2, 256')
        A('s_cbranch_scc1 L_end')
        for reg, off in ((12, 8), (16, 16), (40, 24), (36, 96), (8, 0), (20, 32), (50, 40), (24, 56), (48, 64),
                         (28, 72), (32, 80), (44, 88)):
            A('s_load_dwordx2 s[%d:%d], s[0:1], %d' % (reg, reg + 1, off))
        self.stamp('start')
        A('v_and_b32 v1, 63, v0')
        A('v_lshrrev_b32 v2, 6, v0')
        A('s_and_b32 %s, s2, 7' % sG)
        A('s_lshr_b32 %s, s2, 3' % sJ)
        A('v_readfirstlane_b32 %s, v2' % sW)
        for srd, size in ((8, 2097152), (12, 2097152), (16, 2097152), (20, 2097152), (24, 1409024), (28, 1409024),
                          (32, 2097152), (36, WS_SIZE), (40, 4096), (44, 256)):
            A('s_mov_b32 s%d, %d' % (srd + 2, size))
            A('s_mov_b32 s%d, 0x20000' % (srd + 3))
        A('s_movk_i32 %s, 4096' % s4096)
        A('s_getreg_b32 %s, hwreg(HW_REG_XCC_ID, 0, 3)' % sXCC)
        A('s_getpc_b64 s[52:53]')
        A.label('L_pc')
        A('s_mov_b32 %s, 0' % sSPIN)
        A('s_lshr_b32 %s, %s, 1' % (sCB, sJ))
        A('s_and_b32 %s, %s, 1' % (sRHO, sJ))
        A('v_and_b32 v2, 7, v1')
        A('v_lshrrev_b32 v3, 3, v1')
        A('s_lshl_b32 %s, %s, 7' % (sA, sG))
        A('s_lshl_b32 %s, %s, 5' % (sB, sW))
        A('s_add_u32 %s, %s, %s' % (sA, sA, sB))
        A('v_lshl_add_u32 v4, v2, 2, %s' % sA)
        A('s_lshl_b32 %s, %s, 16' % (sB, sJ))
        A('v_lshl_add_u32 v5, v3, 13, %s' % sB)
        A('v_add_u32 v5, v5, v4')
        A('v_add_u32 v6, -3072, v5')
        A('v_lshlrev_b32 v4, 2, v4')

    def p0_loads(self):
        A = self.A
        self.KR, self.VR, self.SH = 32, 44, 52
        self.XG = 56
        self.XROW = 72
        self.KW = 80
        A('v_mov_b32 v7, 0')
        A('s_lshl_b32 %s, s2, 7' % sA)
        A('s_add_u32 %s, %s, %d' % (sA, sA, WS_CNT))
        A('v_mov_b32 v8, %s' % sA)
        A('s_waitcnt lgkmcnt(0)')
        A('s_load_dword %s, s[36:37], %d' % (sEP, WS_EPOCH))
        A('s_mov_b64 %s, exec' % sM)
        A('s_mov_b64 exec, 1')
        A('buffer_store_dword v7, v8, %s, 0 offen sc1' % SWS)
        A('s_mov_b64 exec, %s' % sM)
        A('buffer_load_dwordx4 %s, v4, %s, 0 offen' % (v(self.SH, 4), SSH))
        for i in range(3):
            A('buffer_load_dword %s, v6, %s, 0 offen offset:%d' % (v(self.KR + i), SK, 1024 * i))
        for i in range(8):
            A('buffer_load_dword %s, v5, %s, %s offen offset:%d' % (
                v(self.KR + 3 + i), SK, s4096 if i >= 4 else '0', 1024 * (i & 3)))
        for i in range(8):
            A('buffer_load_dword %s, v5, %s, %s offen offset:%d' % (
                v(self.VR + i), SV, s4096 if i >= 4 else '0', 1024 * (i & 3)))
        A('s_lshl_b32 %s, %s, 5' % (sB, sG))
        A('s_add_u32 %s, %s, %s' % (sB, sB, sJ))
        A('s_lshl_b32 %s, %s, 2' % (sC, sB))
        A('s_load_dword %s, s[50:51], %s' % (sD, sC))
        A('s_lshl_b32 %s, %s, 13' % (sC, sB))
        A('v_lshl_add_u32 v7, v0, 4, %s' % sC)
        for c in range(2):
            for wn in range(2):
                A('buffer_load_dwordx4 %s, v7, %s, %s offen offset:%d' % (
                    v(self.KW + 8 * c + 4 * wn, 4), SKK, s4096 if c else '0', 4 * wn))
        for i in range(8):
            A('buffer_load_dword %s, v5, %s, %s offen offset:%d' % (
                v(self.XG + 4 * (i >> 1) + (i & 1)), SX_, s4096 if i >= 4 else '0', 1024 * (i & 3)))
        A('s_lshl_b32 %s, s2, 13' % sC)
        A('s_lshl_b32 %s, %s, 11' % (sDd, sW))
        A('s_add_u32 %s, %s, %s' % (sC, sC, sDd))
        A('v_lshl_add_u32 v8, v1, 4, %s' % sC)
        for i in range(2):
            A('buffer_load_dwordx4 %s, v8, %s, 0 offen offset:%d' % (v(self.XROW + 4 * i, 4), SX_, 1024 * i))
        A('s_lshl_b32 %s, %s, 2' % (sC, sJ))
        A('s_add_u32 %s, %s, %s' % (sC, sC, sW))
        A('s_and_b32 %s, %s, 7' % (sC, sC))
        A('s_lshl_b32 %s, %s, 13' % (sC, sC))
        A('v_lshl_add_u32 v9, v1, 7, %s' % sC)
        A('v_min_u32 v9, CODE_LAST, v9')
        A('global_load_dword v10, v9, s[52:53]')
        A('s_lshl_b32 %s, %s, 5' % (sC, sG))
        A('s_lshl_b32 %s, %s, 3' % (sDd, sW))
        A('s_add_u32 %s, %s, %s' % (sC, sC, sDd))
        A('v_add_u32 v11, %s, v2' % sC)
        A('v_lshlrev_b32 v11, 15, v11')
        A('s_lshl_b32 %s, %s, 10' % (sC, sJ))
        A('s_add_u32 %s, %s, %d' % (sC, sC, WS_UX))
        A('v_lshl_add_u32 v12, v3, 4, %s' % sC)
        A('v_add_u32 v11, v11, v12')
        A('v_lshrrev_b32 v14, 3, v0')
        A('v_and_b32 v15, 7, v0')
        A('v_lshlrev_b32 v15, 4, v15')
        A('s_lshl_b32 %s, %s, 15' % (sC, sB))
        A('s_add_u32 %s, %s, %d' % (sC, sC, WS_UX))
        A('v_lshl_add_u32 v12, v14, 10, v15')
        A('v_add_u32 v12, %s, v12' % sC)
        A('v_lshl_add_u32 v13, v14, 9, v15')
        A('v_add_u32 v13, %d, v13' % WS_ST)
        A('s_cmp_ge_u32 %s, 2' % sW)
        A('s_cselect_b32 s24, s48, s24')
        A('s_cselect_b32 s25, s49, s25')
        for i in range(3):
            A('v_add_u32 v19, %d, v1' % (64 * i))
            A('v_mul_u32_u24 v20, 5462, v19')
            A('v_lshrrev_b32 v20, 16, v20')
            A('v_mul_u32_u24 v21, 12, v20')
            A('v_sub_u32 v21, v19, v21')
            A('v_bfe_u32 v22, v20, 2, 1')
            A('v_lshlrev_b32 v22, 1, v22')
            A('v_sub_u32 v21, v21, v22')
            A('v_add_u32 v22, 12, v21')
            A('v_min_u32 v21, v21, v22')
            A('v_mul_u32_u24 v20, 2752, v20')
            A('v_lshl_add_u32 %s, v21, 4, v20' % v(16 + i))
        A('s_and_b32 %s, %s, 1' % (sC, sW))
        A('s_mul_i32 %s, %s, %d' % (sC, sC, 16 * 2752))
        A('s_mul_i32 %s, %s, 192' % (sDd, sCB))
        A('s_add_u32 %s, %s, %s' % (sC, sC, sDd))
        for i in range(3):
            A('v_add_u32 %s, %s, %s' % (v(16 + i), sC, v(16 + i)))
        A('v_mov_b32 v20, 0')
        A('v_mov_b32 v21, 0')
        A('v_mov_b32 v22, 0')
        A('v_mov_b32 v23, 0')
        A('v_lshlrev_b32 v19, 4, v1')
        A('v_and_b32 v19, 0x1f0, v19')
        A('v_lshrrev_b32 v24, 5, v1')
        A('v_mul_u32_u24 v24, %d, v24' % UCH)
        A('v_add_u32 v19, v19, v24')
        A('v_add_u32 v19, %d, v19' % UIMG)
        A('ds_write_b128 v19, v[20:23]')

    def w1_dma(self, chunk, ldsbase, token):
        A = self.A
        A('s_mov_b32 %s, %d' % (sDd, chunk * 32 * 2752))
        for i in range(3):
            A('s_add_u32 m0, s48, %d' % (ldsbase + 1024 * i))
            A('buffer_load_dwordx4 %s, %s, %s offen lds' % (v(16 + i), SW1, sDd), token=token)

    def w1_round(self, chunks, bases, token):
        for c, b in zip(chunks, bases):
            self.w1_dma(c, b, token)

    def w1_setup(self):
        A = self.A
        A('s_lshr_b32 %s, %s, 1' % (sA, sW))
        A('s_mul_i32 %s, %s, %d' % (sA, sA, UPOFF))
        A('s_and_b32 %s, %s, 1' % (sB, sW))
        A('s_mul_i32 %s, %s, 3072' % (sB, sB))
        A('s_add_u32 s48, %s, %s' % (sA, sB))

    def p0_compute(self):
        A = self.A
        KF, VF, SF, R, UG = 96, 118, 134, 142, 160
        A('s_waitcnt lgkmcnt(0)')
        A('s_mul_i32 %s, %s, 0x9E3779B1' % (sT, sEP))
        A('s_add_u32 %s, %s, 0x85EBCA6B' % (sT, sT))
        A('s_not_b32 %s, %s' % (sTn, sT))
        for i in range(4):
            for G in (UG, self.XG):
                A('v_mov_b32 %s, %s' % (v(G + 4 * i + 2), sT))
                A('v_mov_b32 %s, %s' % (v(G + 4 * i + 3), sTn))
        for jx in range(4):
            for c in range(2):
                src = v(self.SH + 2 * c + (jx >> 1))
                if jx & 1:
                    A('v_and_b32 %s, 0xffff0000, %s' % (v(SF + 2 * jx + c), src))
                else:
                    A('v_lshlrev_b32 %s, 16, %s' % (v(SF + 2 * jx + c), src))
        for i in range(11):
            A('v_lshlrev_b32 %s, 16, %s' % (v(KF + 2 * i), v(self.KR + i)))
            A('v_and_b32 %s, 0xffff0000, %s' % (v(KF + 2 * i + 1), v(self.KR + i)))
        for step, jx in enumerate((3, 2, 1, 0)):
            for t in range(8):
                if step == 0:
                    A('v_pk_mul_f32 %s, %s, %s' % (v(R + 2 * t, 2), v(KF + 2 * t, 2), v(SF + 2 * jx, 2)))
                else:
                    A('v_pk_fma_f32 %s, %s, %s, %s' % (v(R + 2 * t, 2), v(KF + 2 * (t + step), 2), v(SF + 2 * jx, 2),
                                                       v(R + 2 * t, 2)))
        for t in range(8):
            A('v_lshlrev_b32 %s, 16, %s' % (v(VF + 2 * t), v(self.VR + t)))
            A('v_and_b32 %s, 0xffff0000, %s' % (v(VF + 2 * t + 1), v(self.VR + t)))
        for t in range(8):
            A('v_pk_mul_f32 %s, %s, %s' % (v(R + 2 * t, 2), v(R + 2 * t, 2), v(VF + 2 * t, 2)))
        for c in range(2):
            for k in range(4):
                A('v_cvt_pk_bf16_f32 %s, %s, %s' % (v(UG + 8 * c + 4 * (k >> 1) + (k & 1)),
                                                    v(R + 2 * (7 - 2 * k) + c), v(R + 2 * (6 - 2 * k) + c)))
            for h in range(2):
                pl = 2 * c + h
                A('buffer_store_dwordx4 %s, v11, %s, 0 offen offset:%d sc1' % (v(UG + 4 * pl, 4), SWS, 128 * pl))
        self.stamp('u_stored')
        for i in range(4):
            A('buffer_store_dwordx4 %s, v11, %s, 0 offen offset:%d sc1' % (v(self.XG + 4 * i, 4), SWS, 128 * (4 + i)))

    def k_image(self):
        A = self.A
        O = 96
        A('v_lshlrev_b32 v19, 4, v0')
        A('v_add_u32 v19, %d, v19' % (KIMG + 32))
        for c in range(2):
            w0, w1 = self.KW + 8 * c, self.KW + 8 * c + 4
            for k in range(4):
                A('v_alignbit_b32 %s, %s, %s, 16' % (v(O + 4 * c + k), v(w1 + k), v(w0 + k)))
            A('ds_write_b128 v19, %s offset:%d' % (v(w0, 4), KCH * c))
            A('ds_write_b128 v19, %s offset:%d' % (v(O + 4 * c, 4), KCH * c + KODD))
        A('v_mov_b32 v104, 0')
        A('v_mov_b32 v105, 0')
        A('v_mov_b32 v106, 0')
        A('v_mov_b32 v108, 0')
        A('v_mov_b32 v109, 0')
        A('v_mov_b32 v110, 0')
        A('v_lshlrev_b32 v107, 16, %s' % v(self.KW))
        A('v_lshlrev_b32 v111, 16, %s' % v(self.KW + 8))
        A('v_cmp_eq_u32 vcc, 0, v0')
        A('s_and_saveexec_b64 %s, vcc' % sM)
        lab = A.newlabel('L_kp')
        A('s_cbranch_execz %s' % lab)
        A.begin_arm()
        A('v_mov_b32 v24, %d' % KIMG)
        for c in range(2):
            A('ds_write_b128 v24, v[20:23] offset:%d' % (KCH * c))
            A('ds_write_b128 v24, v[20:23] offset:%d' % (KCH * c + 16))
            A('ds_write_b128 v24, v[20:23] offset:%d' % (KCH * c + KODD))
            A('ds_write_b128 v24, %s offset:%d' % (v(104 + 4 * c, 4), KCH * c + KODD + 16))
        A.end_arm()
        A.label(lab)
        A('s_mov_b64 exec, %s' % sM)

    def x_stats(self):
        A = self.A
        S = 112
        for i in range(4):
            A('v_mov_b32 %s, 0' % v(S + i))
        A('s_mov_b32 %s, 0x3f803f80' % sA)
        for k in range(4):
            for r in range(2):
                x = v(self.XROW + 4 * r + k)
                A('v_dot2c_f32_bf16 %s, %s, %s' % (v(S + 2 * r), sA, x))
                A('v_dot2c_f32_bf16 %s, %s, %s' % (v(S + 2 * r + 1), x, x))
        for ctl in ('row_shr:1 row_mask:0xf bank_mask:0xf bound_ctrl:0', 'row_shr:2 row_mask:0xf bank_mask:0xf bound_ctrl:0',
                    'row_shr:4 row_mask:0xf bank_mask:0xf bound_ctrl:0', 'row_shr:8 row_mask:0xf bank_mask:0xf bound_ctrl:0',
                    'row_bcast:15 row_mask:0xa bank_mask:0xf', 'row_bcast:31 row_mask:0xc bank_mask:0xf'):
            for i in range(4):
                A('v_add_f32_dpp %s, %s, %s %s' % (v(S + i), v(S + i), v(S + i), ctl))
        self.ln_scalars(S, S + 2, 116)
        A('v_cvt_pk_bf16_f32 v124, %s, v118' % v(S))
        A('v_cvt_pk_bf16_f32 v125, %s, v119' % v(S + 2))
        A('v_mov_b32 v126, %s' % sT)
        A('s_xor_b32 %s, %s, %s' % (sA, sTn, sXCC))
        A('v_mov_b32 v127, %s' % sA)
        A('s_lshl_b32 %s, %s, 9' % (sA, sJ))
        A('s_lshl_b32 %s, %s, 7' % (sB, sW))
        A('s_add_u32 %s, %s, %s' % (sA, sA, sB))
        A('s_lshl_b32 %s, %s, 4' % (sB, sG))
        A('s_add_u32 %s, %s, %s' % (sA, sA, sB))
        A('s_add_u32 %s, %s, %d' % (sA, sA, WS_ST))
        A('v_mov_b32 v116, %s' % sA)
        A('s_mov_b64 %s, exec' % sM)
        A('s_lshl_b64 exec, 1, 63')
        A('buffer_store_dwordx4 v[124:127], v116, %s, 0 offen sc1' % SWS)
        A('s_mov_b64 exec, %s' % sM)

    def ln_scalars(self, r0, r1, t):
        A = self.A
        A('s_mov_b32 %s, 0x3b000000' % sA)
        for r in (r0, r1):
            A('v_mul_f32 %s, %s, %s' % (v(r), sA, v(r)))
            A('v_mul_f32 %s, %s, %s' % (v(r + 1), sA, v(r + 1)))
        for r in (r0, r1):
            A('v_fma_f32 %s, -%s, %s, %s' % (v(r + 1), v(r), v(r), v(r + 1)))
        for r in (r0, r1):
            A('v_max_f32 %s, 0, %s' % (v(r + 1), v(r + 1)))
        A('v_cvt_pk_bf16_f32 %s, %s, %s' % (v(t), v(r0 + 1), v(r1 + 1)))
        A('s_mov_b32 %s, 0x3727c5ac' % sA)
        A('v_lshlrev_b32 %s, 16, %s' % (v(t + 2), v(t)))
        A('v_and_b32 %s, 0xffff0000, %s' % (v(t + 3), v(t)))
        A('v_add_f32 %s, %s, %s' % (v(t + 2), sA, v(t + 2)))
        A('v_add_f32 %s, %s, %s' % (v(t + 3), sA, v(t + 3)))
        A('v_cvt_pk_bf16_f32 %s, %s, %s' % (v(t), v(t + 2), v(t + 3)))
        A('v_lshlrev_b32 %s, 16, %s' % (v(t + 2), v(t)))
        A('v_and_b32 %s, 0xffff0000, %s' % (v(t + 3), v(t)))
        A('v_sqrt_f32 %s, %s' % (v(t + 2), v(t + 2)))
        A('v_sqrt_f32 %s, %s' % (v(t + 3), v(t + 3)))

    KFR = 128
    CACC = 32
    BR = 64
    NBR = 6

    def conv_addr(self):
        A = self.A
        A('v_and_b32 v2, 15, v1')
        A('v_lshrrev_b32 v3, 4, v1')
        A('s_lshr_b32 %s, %s, 1' % (sA, sW))
        A('s_and_b32 %s, %s, 1' % (sB, sW))
        A('v_lshrrev_b32 v4, 1, v3')
        A('v_and_b32 v5, 1, v3')
        A('v_lshl_add_u32 v6, v4, 4, v2')
        A('v_lshlrev_b32 v7, 3, v5')
        A('v_sub_u32 v6, v6, v7')
        A('s_lshl_b32 %s, %s, 5' % (sC, sB))
        A('s_add_u32 %s, %s, 9' % (sC, sC))
        A('v_add_u32 v6, %s, v6' % sC)
        A('v_and_b32 v7, 1, v6')
        A('v_and_b32 v6, -2, v6')
        A('v_lshlrev_b32 v6, 1, v6')
        A('v_mul_u32_u24 v7, %d, v7' % KODD)
        A('s_mul_i32 %s, %s, %d' % (sC, sA, KCH))
        A('s_add_u32 %s, %s, %d' % (sC, sC, KIMG))
        A('v_add3_u32 v24, v6, v7, %s' % sC)
        A('v_sub_u32 v6, v2, v4')
        A('v_lshlrev_b32 v6, 5, v6')
        A('v_lshl_add_u32 v6, v5, 4, v6')
        A('s_mul_i32 %s, %s, %d' % (sC, sA, UCH))
        A('s_lshl_b32 %s, %s, 6' % (sDd, sB))
        A('s_sub_u32 %s, %s, %s' % (sC, sC, sDd))
        A('s_add_u32 %s, %s, %d' % (sC, sC, UIMG + 512 - 384))
        A('v_add_u32 v25, %s, v6' % sC)
        A('v_lshlrev_b32 v26, 4, v0')
        A('v_add_u32 v26, %d, v26' % (UIMG + 512))
        A('v_lshlrev_b32 v27, 5, v0')
        A('v_add_u32 v27, %d, v27' % XIMG)
        A('v_lshlrev_b32 v6, 4, v2')
        A('v_lshl_add_u32 v6, v3, 2, v6')
        A('s_lshl_b32 %s, %s, 9' % (sC, sB))
        A('v_add_u32 v6, %s, v6' % sC)
        A('v_lshlrev_b32 v28, 2, v6')
        A('v_add_u32 v28, %d, v28' % XIMG)
        A('v_xor_b32 v7, 4, v6')
        A('v_lshlrev_b32 v29, 1, v7')
        A('s_mul_i32 %s, %s, %d' % (sC, sA, UCH))
        A('s_add_u32 %s, %s, %d' % (sC, sC, UIMG + 512))
        A('v_add_u32 v29, %s, v29' % sC)
        A('s_lshl_b32 %s, %s, 11' % (sC, sW))
        A('s_add_u32 %s, %s, %d' % (sC, sC, RED))
        A('v_lshl_add_u32 v30, v1, 4, %s' % sC)
        A('s_xor_b32 %s, %s, 1' % (sC, sW))
        A('s_lshl_b32 %s, %s, 11' % (sC, sC))
        A('s_add_u32 %s, %s, %d' % (sC, sC, RED))
        A('v_lshl_add_u32 v31, v1, 4, %s' % sC)
        A('v_lshlrev_b32 v6, 9, v5')
        A('v_lshl_add_u32 v6, v2, 5, v6')
        A('v_lshl_add_u32 v6, v4, 4, v6')
        A('s_lshl_b32 %s, %s, 5' % (sC, sG))
        A('s_add_u32 %s, %s, %s' % (sC, sC, sJ))
        A('s_lshl_b32 %s, %s, 1' % (sC, sC))
        A('s_add_u32 %s, %s, %s' % (sC, sC, sA))
        A('s_lshl_b32 %s, %s, 12' % (sC, sC))
        A('s_lshl_b32 %s, %s, 10' % (sDd, sB))
        A('s_add_u32 %s, %s, %s' % (sC, sC, sDd))
        A('s_add_u32 %s, %s, %d' % (sC, sC, WS_HT))
        A('v_add_u32 v14, %s, v6' % sC)
        A('s_cmp_eq_u32 %s, 0' % sA)
        A('s_lshl_b32 %s, %s, 16' % (sC, sD))
        A('s_and_b32 %s, %s, 0xffff0000' % (sDd, sD))
        A('s_cmp_eq_u32 %s, 0' % sA)
        A('s_cselect_b32 %s, %s, %s' % (sD, sC, sDd))
        A('s_mov_b32 %s, 0x01000c0c' % sC)
        A('s_mov_b32 %s, 0x03020c0c' % sDd)
        A('s_cselect_b32 s49, %s, %s' % (sC, sDd))
        A('v_bfe_u32 v6, v1, 2, 2')
        A('v_lshl_add_u32 v6, v3, 2, v6')
        A('v_mul_u32_u24 v6, 192, v6')
        A('v_bfe_u32 v7, v1, 1, 1')
        A('v_mul_u32_u24 v7, %d, v7' % UPOFF)
        A('v_add_u32 v6, v6, v7')
        A('v_and_b32 v7, 1, v1')
        A('s_mul_i32 %s, %s, 3' % (sC, sW))
        A('v_lshl_add_u32 v8, v5, 1, %s' % sC)
        A('v_add_u32 v9, v8, v7')
        A('v_subrev_u32 v10, 12, v9')
        A('v_min_u32 v9, v9, v10')
        A('v_lshl_add_u32 v15, v9, 4, v6')
        A('v_add_u32 v9, 2, v8')
        A('v_subrev_u32 v10, 12, v9')
        A('v_min_u32 v9, v9, v10')
        A('v_lshl_add_u32 v19, v9, 4, v6')
        A('v_lshl_add_u32 v19, v7, 3, v19')

    def kfrag_reads(self):
        A = self.A
        for ap in range(32):
            if ap and ap % 8 == 0:
                A('v_add_u32 v24, 1024, v24')
            o = 32 * (ap % 8)
            A('ds_read2_b32 %s, v24 offset0:%d offset1:%d' % (v(self.KFR + 4 * ap, 2), o, o + 1))
            A('ds_read2_b32 %s, v24 offset0:%d offset1:%d' % (v(self.KFR + 4 * ap + 2, 2), o + 2, o + 3))

    def tagcheck(self, G, n, dst, tmp, xcc=None):
        A = self.A
        regs = []
        for i in range(0, n, 2):
            A('v_bitop3_b32 %s, %s, %s, %s bitop3:0x7e' % (v(tmp + len(regs)), v(G + 4 * i + 2), v(G + 4 * i + 6), sT))
            regs.append(tmp + len(regs))
            A('v_bitop3_b32 %s, %s, %s, %s bitop3:0x7e' % (v(tmp + len(regs)), v(G + 4 * i + 3), v(G + 4 * i + 7), sTn))
            if xcc is not None:
                A('v_and_b32 %s, -8, %s' % (v(tmp + len(regs)), v(tmp + len(regs))))
            regs.append(tmp + len(regs))
        assert len(regs) == 4
        A('v_or3_b32 %s, %s, %s, %s' % (v(dst), v(regs[0]), v(regs[1]), v(regs[2])))
        A('v_or_b32 %s, %s, %s' % (v(dst), v(dst), v(regs[3])))

    def poll_u(self):
        A = self.A
        UG = 64
        A.wait(vm0=True)
        A.label('L_pu')
        for pl in range(4):
            A('buffer_load_dwordx4 %s, v12, %s, 0 offen offset:%d sc1' % (v(UG + 4 * pl, 4), SWS, 128 * pl))
        A('s_waitcnt vmcnt(0)')
        self.tagcheck(UG, 4, 84, 80)
        A('v_cmp_ne_u32 vcc, 0, v84')
        A('s_cbranch_vccz L_pu_ok')
        self.spin_tail('L_pu', 1)
        A.label('L_pu_ok')
        A('v_add_u32 v85, %d, v26' % UCH)
        for c in range(2):
            A('ds_write2_b64 %s, %s, %s offset0:0 offset1:1' % ('v85' if c else 'v26', v(UG + 8 * c, 2),
                                                               v(UG + 8 * c + 4, 2)))

    def poll_x(self):
        A = self.A
        XG, SG = 88, 104
        A.wait(vm0=True)
        A.label('L_px')
        for pl in range(4):
            A('buffer_load_dwordx4 %s, v12, %s, 0 offen offset:%d sc1' % (v(XG + 4 * pl, 4), SWS, 128 * (4 + pl)))
        for pl in range(4):
            A('buffer_load_dwordx4 %s, v13, %s, 0 offen offset:%d sc1' % (v(SG + 4 * pl, 4), SWS, 128 * pl))
        A('s_waitcnt vmcnt(0)')
        self.tagcheck(XG, 4, 124, 120)
        self.tagcheck(SG, 4, 125, 120, xcc=True)
        A('v_or_b32 v124, v124, v125')
        A('v_cmp_ne_u32 vcc, 0, v124')
        A('s_cbranch_vccz L_px_ok')
        self.spin_tail('L_px', 2)
        A.label('L_px_ok')
        for h in range(2):
            A('ds_write2_b64 v27, %s, %s offset0:%d offset1:%d' % (v(XG + 8 * h, 2), v(XG + 8 * h + 4, 2), 2 * h, 2 * h + 1))
        A('v_add_u32 v120, 8192, v27')
        for h in range(2):
            A('ds_write2_b64 v120, %s, %s offset0:%d offset1:%d' % (v(SG + 8 * h, 2), v(SG + 8 * h + 4, 2), 2 * h, 2 * h + 1))
        A('s_xor_b32 %s, %s, %s' % (sA, sTn, sXCC))
        A('v_and_b32 v121, 7, v0')
        A('v_cmp_ne_u32 vcc, %s, %s' % (sA, v(SG + 3)))
        A('v_cmp_eq_u32 %s, %s, v121' % (sM, sG))
        A('s_and_b64 vcc, vcc, %s' % sM)
        A('s_cselect_b32 %s, 1, 0' % sA)
        A('v_mov_b32 v122, %s' % sA)
        A('s_lshl_b32 %s, %s, 2' % (sB, sW))
        A('s_add_u32 %s, %s, %d' % (sB, sB, XCCF))
        A('v_mov_b32 v123, %s' % sB)
        A('ds_write_b32 v123, v122')

    def epoch_store(self):
        A = self.A
        lab = A.newlabel('L_ep')
        A('s_or_b32 %s, s2, %s' % (sA, sW))
        A('s_cmp_lg_u32 %s, 0' % sA)
        A('s_cbranch_scc1 %s' % lab)
        A.begin_arm()
        A('v_mov_b32 v120, %s' % sT)
        A('v_mov_b32 v121, %d' % WS_EPOCH)
        A('s_mov_b64 exec, 1')
        A('buffer_store_dword v120, v121, %s, 0 offen sc1' % SWS)
        A('s_mov_b64 exec, -1')
        A.end_arm()
        A.label(lab)
        A('v_mov_b32 v120, %d' % XCCF)
        A('ds_read_b128 v[120:123], v120')
        A('v_or3_b32 v120, v120, v121, v122')
        A('v_or_b32 v120, v120, v123')
        A('v_readfirstlane_b32 %s, v120' % sA)
        A('s_xor_b32 %s, %s, 1' % (sFAST, sA))

    def conv_mfmas(self, cts, zs):
        A = self.A
        zs = list(zs)
        seen = set()
        slot = getattr(self, 'bslot', 0)

        def rd(k):
            A('ds_read_b128 %s, v25 offset:%d' % (v(self.BR + 4 * ((slot + k) % self.NBR), 4), 128 * (zs[k] + 3)))
        pre = min(self.NBR - 1, len(zs))
        for k in range(pre):
            rd(k)
        for k, z in enumerate(zs):
            b = v(self.BR + 4 * ((slot + k) % self.NBR), 4)
            first = True
            for ct in cts:
                ap = 4 * ct - z
                if ap < 0:
                    continue
                acc = v(self.CACC + 4 * ct, 4)
                A('v_mfma_f32_16x16x32_bf16 %s, %s, %s, %s' % (acc, v(self.KFR + 4 * ap, 4), b,
                                                                acc if ct in seen else '0'))
                seen.add(ct)
                if first and k + pre < len(zs):
                    rd(k + pre)
                first = False
        self.bslot = (slot + len(zs)) % self.NBR

    EP = 88

    def conv_pre(self, stage):
        A = self.A
        XF, QN, UD, UR, T = 88, 96, 104, 112, 116
        for i in range(2):
            A('ds_read_b128 %s, v28 offset:%d' % (v(XF + 4 * i, 4), 4096 * stage + 1024 * i))
            A('ds_read_b128 %s, v28 offset:%d' % (v(QN + 4 * i, 4), 8192 + 4096 * stage + 1024 * i))
            A('ds_read_b64 %s, v29 offset:%d' % (v(UR + 2 * i, 2), 2048 * stage + 512 * i))
        for e in range(8):
            A('v_perm_b32 %s, %s, %s, s49' % (v(XF + e), v(XF + e), v(XF + e)))
        for e in range(0, 8, 2):
            for k in range(2):
                A('v_lshlrev_b32 %s, 16, %s' % (v(T + k), v(QN + e + k)))
                A('v_and_b32 %s, 0xffff0000, %s' % (v(T + 2 + k), v(QN + e + k)))
            for k in range(2):
                A('v_rcp_f32 %s, %s' % (v(T + 2 + k), v(T + 2 + k)))
                A('v_sub_f32 %s, %s, %s' % (v(T + k), v(XF + e + k), v(T + k)))
            A('v_cvt_pk_bf16_f32 %s, %s, %s' % (v(T + 4), v(T), v(T + 1)))
            A('v_lshlrev_b32 %s, 16, %s' % (v(T), v(T + 4)))
            A('v_and_b32 %s, 0xffff0000, %s' % (v(T + 1), v(T + 4)))
            for k in range(2):
                A('v_mul_f32 %s, %s, %s' % (v(T + k), v(T + k), v(T + 2 + k)))
            A('v_cvt_pk_bf16_f32 %s, %s, %s' % (v(T + 4), v(T), v(T + 1)))
            A('v_lshlrev_b32 %s, 16, %s' % (v(QN + e), v(T + 4)))
            A('v_and_b32 %s, 0xffff0000, %s' % (v(QN + e + 1), v(T + 4)))
        for i in range(2):
            A('v_and_b32 %s, 0xffff0000, %s' % (v(UD + 4 * i + 0), v(UR + 2 * i + 1)))
            A('v_lshlrev_b32 %s, 16, %s' % (v(UD + 4 * i + 1), v(UR + 2 * i + 1)))
            A('v_and_b32 %s, 0xffff0000, %s' % (v(UD + 4 * i + 2), v(UR + 2 * i)))
            A('v_lshlrev_b32 %s, 16, %s' % (v(UD + 4 * i + 3), v(UR + 2 * i)))
        for e in range(8):
            A('v_mul_f32 %s, %s, %s' % (v(UD + e), sD, v(UD + e)))

    def conv_red_write(self, stage):
        A = self.A
        c0 = self.CACC + 16 * stage
        l1, l2 = A.newlabel('L_rw'), A.newlabel('L_rw')
        A('s_bitcmp1_b32 %s, 0' % sW)
        A('s_cbranch_scc1 %s' % l1)
        A.begin_arm()
        for i in range(2):
            A('ds_write_b128 v30, %s offset:%d' % (v(c0 + 8 + 4 * i, 4), 1024 * i))
        for e in range(8):
            A('v_add_f32 %s, %s, %s' % (v(104 + e), v(104 + e), v(c0 + e)))
        A('s_branch %s' % l2)
        A.end_arm()
        A.label(l1)
        A.begin_arm()
        for i in range(2):
            A('ds_write_b128 v30, %s offset:%d' % (v(c0 + 4 * i, 4), 1024 * i))
        for e in range(8):
            A('v_add_f32 %s, %s, %s' % (v(104 + e), v(104 + e), v(c0 + 8 + e)))
        A.end_arm()
        A.label(l2)

    def conv_finish(self, stage):
        A = self.A
        XF, QN, UD, PT, O = 88, 96, 104, 112, 120
        for i in range(2):
            A('ds_read_b128 %s, v31 offset:%d' % (v(PT + 4 * i, 4), 1024 * i))
        for e in range(8):
            A('v_add_f32 %s, %s, %s' % (v(UD + e), v(UD + e), v(PT + e)))
        for e in range(8):
            A('v_fma_f32 %s, %s, %s, %s' % (v(UD + e), v(QN + e), v(UD + e), v(XF + e)))
        for k in range(4):
            A('v_cvt_pk_bf16_f32 %s, %s, %s' % (v(O + k), v(UD + 2 * k), v(UD + 2 * k + 1)))
        A('v_permlane16_swap_b32 %s, %s' % (v(O), v(O + 2)))
        A('v_permlane16_swap_b32 %s, %s' % (v(O + 1), v(O + 3)))
        A('buffer_store_dwordx4 %s, v14, %s, 0 offen offset:%d sc1' % (v(O, 4), SWS, 2048 * stage), token='h%d' % stage)

    def cnt_add(self, stage):
        A = self.A
        lab = A.newlabel('L_ca')
        A('s_cmp_lg_u32 %s, 0' % sW)
        A('s_cbranch_scc1 %s' % lab)
        A.begin_arm()
        A('s_lshr_b32 %s, %s, 4' % (sA, sJ))
        A('s_lshl_b32 %s, %s, 1' % (sB, sG))
        A('s_add_u32 %s, %s, %s' % (sA, sA, sB))
        A('s_lshl_b32 %s, %s, 7' % (sA, sA))
        A('s_add_u32 %s, %s, %d' % (sA, sA, WS_CNT + stage * 128 * 128))
        A('v_lshl_add_u32 v4, v1, 11, %s' % sA)
        A('v_mov_b32 v5, 1')
        A('s_mov_b64 exec, 0xff')
        A('buffer_atomic_add v5, v4, %s, 0 offen sc1' % SWS)
        A('s_mov_b64 exec, -1')
        A.end_arm()
        A.label(lab)

    def w1_tr(self, chunk, base):
        A = self.A
        hi = base >= 61760
        off = base - (61760 if hi else 0)
        if base == C15:
            off = 0
        for c in range(3):
            for hf in range(2):
                if base == C15:
                    reg = 'v22' if c < 2 else 'v23'
                elif hi:
                    reg = 'v20' if c < 2 else 'v21'
                else:
                    reg = 'v15' if c < 2 else 'v19'
                A('ds_read_b64_tr_b16 %s, %s offset:%d' % (a(4 * (3 * chunk + c) + 2 * hf, 2), reg,
                                                           off + 3072 * hf + (8 if c == 1 else 0)))

    def w1_tr_setup(self):
        A = self.A
        A('v_add_u32 v20, 61760, v15')
        A('v_add_u32 v21, 61760, v19')
        A('s_mov_b32 %s, %d' % (sA, C15))
        A('v_add_u32 v22, %s, v15' % sA)
        A('v_add_u32 v23, %s, v19' % sA)

    ACC1 = (32, 80)
    BF = 128
    CS = 160
    ST = 176
    ET = 178
    WDV = 208

    def gemm_addr(self):
        A = self.A
        A('v_lshrrev_b32 v4, 3, v1')
        A('v_and_b32 v5, 7, v1')
        A('v_lshlrev_b32 v6, 1, v3')
        A('v_xor_b32 v6, v5, v6')
        A('v_lshlrev_b32 v6, 4, v6')
        A('v_lshl_add_u32 v6, v4, 12, v6')
        A('s_lshl_b32 %s, %s, 8' % (sA, sG))
        A('s_lshl_b32 %s, %s, 7' % (sB, sRHO))
        A('s_add_u32 %s, %s, %s' % (sA, sA, sB))
        A('s_lshl_b32 %s, %s, 17' % (sB, sW))
        A('s_add_u32 %s, %s, %s' % (sA, sA, sB))
        A('s_add_u32 %s, %s, %d' % (sA, sA, WS_HT))
        A('v_add_u32 v24, %s, v6' % sA)
        A('v_bfe_u32 v6, v1, 2, 2')
        A('v_lshl_add_u32 v7, v3, 2, v6')
        A('v_bfe_u32 v8, v7, 1, 2')
        A('v_and_b32 v9, 3, v1')
        A('v_lshlrev_b32 v9, 3, v9')
        A('v_lshl_add_u32 v9, v7, 7, v9')
        A('v_lshl_add_u32 v25, v8, 5, v9')
        A('v_bfe_u32 v10, v1, 4, 1')
        A('v_lshlrev_b32 v10, 2, v10')
        A('v_xor_b32 v10, v5, v10')
        A('v_lshlrev_b32 v10, 4, v10')
        A('v_lshl_add_u32 v10, v4, 10, v10')
        A('s_mul_i32 %s, %s, %d' % (sA, sW, 352 * 1024))
        A('s_and_b32 %s, %s, 7' % (sB, sJ))
        A('s_lshl_b32 %s, %s, 7' % (sB, sB))
        A('s_add_u32 %s, %s, %s' % (sA, sA, sB))
        A('v_add_u32 v29, %s, v10' % sA)
        A('v_lshl_add_u32 v10, v3, 3, v6')
        A('v_lshlrev_b32 v10, 7, v10')
        A('v_and_b32 v11, 3, v1')
        A('v_bfe_u32 v12, v1, 3, 1')
        A('v_lshl_add_u32 v11, v12, 2, v11')
        A('v_lshl_add_u32 v30, v11, 4, v10')
        A('v_xor_b32 v31, 64, v30')
        A('v_lshrrev_b32 v6, 5, v1')
        A('v_bfe_u32 v7, v1, 4, 1')
        A('s_mul_i32 %s, %s, 3' % (sA, sW))
        A('s_mul_i32 %s, %s, 12' % (sB, sCB))
        A('s_add_u32 %s, %s, %s' % (sA, sA, sB))
        A('s_lshl_b32 %s, %s, 3' % (sB, sG))
        A('s_lshl_b32 %s, %s, 2' % (sC, sRHO))
        A('s_add_u32 %s, %s, %s' % (sB, sB, sC))
        A('s_mul_i32 %s, %s, %d' % (sB, sB, HH_PITCH))
        A('s_add_u32 %s, %s, %d' % (sB, sB, WS_HH))
        A('s_mov_b32 %s, %d' % (sC, HH_PITCH))
        A('v_add_u32 v8, %s, v7' % sA)
        A('v_mul_lo_u32 v9, v6, %s' % sC)
        A('v_lshl_add_u32 v9, v2, 4, v9')
        A('v_add_u32 v9, %s, v9' % sB)
        A('v_lshl_add_u32 v4, v8, 8, v9')
        A('v_cmp_lt_u32 vcc, v8, %s' % self.vconst(10, 172))
        A('v_cndmask_b32 v4, %s, v4, vcc' % self.vconst(11, 0x80000000))
        A('s_add_u32 %s, %s, 2' % (sA, sA))
        A('s_lshl_b32 %s, %s, 1' % (sC, sC))
        A('v_mul_lo_u32 v8, v7, %s' % sC)
        A('v_add_u32 v5, v8, v9')
        A('s_lshl_b32 %s, %s, 8' % (sB, sA))
        A('s_cmp_lt_u32 %s, 172' % sA)
        A('s_cselect_b32 %s, %s, 0x80000000' % (sB, sB))
        A('v_add_u32 v5, %s, v5' % sB)
        A('v_lshrrev_b32 v8, 5, v1')
        A('v_lshl_add_u32 v8, v8, 4, v2')
        A('s_mov_b32 %s, %d' % (sA, SX))
        A('v_lshl_add_u32 v8, v8, 3, %s' % sA)
        A('v_lshl_add_u32 v7, v2, 3, %s' % sA)
        A('s_lshl_b32 %s, %s, 7' % (sB, sW))
        A('v_add_u32 v6, %s, v7' % sB)
        A('s_lshl_b32 %s, %s, 11' % (sA, sXCC))
        A('s_add_u32 %s, %s, %d' % (sA, sA, WS_CNT))
        A('v_lshl_add_u32 v9, v2, 7, %s' % sA)

    def vconst(self, reg, val):
        self.A('v_mov_b32 %s, 0x%x' % (v(reg), val))
        return v(reg)

    def colsum(self):
        A = self.A
        for k in range(4):
            A('v_mov_b32 %s, 0x3f803f80' % v(172 + k))
        for s in range(16):
            for c in range(3):
                d = v(self.CS + 4 * c, 4)
                A('v_mfma_f32_16x16x32_bf16 %s, %s, v[172:175], %s' % (d, a(4 * (3 * s + c), 4), d if s else '0'))

    def poll_cnt(self, stage):
        A = self.A
        loop, ok = 'L_pc%d' % stage, 'L_pc%d_ok' % stage
        A('s_movk_i32 %s, %d' % (sB, stage * 128 * 128))
        A.wait(vm0=True)
        A.label(loop)
        A('buffer_load_dword v10, v9, %s, %s offen sc1' % (SWS, sB))
        A('s_waitcnt vmcnt(0)')
        A('v_cmp_ne_u32 vcc, 16, v10')
        A('s_cbranch_vccz %s' % ok)
        self.spin_tail(loop, 3 + stage)
        A.label(ok)

    def h_dma(self, p):
        A = self.A
        base = H1 if p else H0
        A('s_lshl_b32 %s, %s, 12' % (sC, sW))
        for ck in range(4):
            for i in range(4):
                A('s_add_u32 m0, %s, %d' % (sC, base + 16384 * ck + 1024 * i))
                A('s_mov_b32 %s, %d' % (sDd, (16 * ck + i) * 32768 + 2048 * p))
                A('buffer_load_dwordx4 v24, %s, %s offen sc1 lds' % (SWS, sDd), token='h%d_%d' % (p, ck))

    def wd_dma(self, i, ldsbase, wstride, token):
        A = self.A
        A('s_mul_i32 %s, %s, %d' % (sC, sW, wstride))
        for k in range(4):
            A('s_add_u32 m0, %s, %d' % (sC, ldsbase + 1024 * k))
            A('s_mov_b32 %s, %d' % (sDd, (32 * i + 8 * k) * 1024))
            A('buffer_load_dwordx4 v29, %s, %s offen lds' % (SWD, sDd), token=token)

    def wd_reg(self, i):
        if i < 4:
            return lambda k, n: a(192 + 16 * i + k, n)
        if i >= 9:
            return lambda k, n: v(self.WDV + 16 * (i - 9) + k, n)
        return lambda k, n: a(16 * (i - 4) + k, n)

    def wd_base(self, ldsbase, wstride):
        A = self.A
        A('s_mul_i32 %s, %s, %d' % (sC, sW, wstride))
        A('s_add_u32 %s, %s, %d' % (sC, sC, ldsbase))
        A('v_add_u32 v12, %s, v30' % sC)
        A('v_add_u32 v13, %s, v31' % sC)

    def wd_tr(self, i, off):
        A = self.A
        R = self.wd_reg(i)
        for kap in range(4):
            for hf in range(2):
                A('ds_read_b64_tr_b16 %s, %s offset:%d' % (R(4 * kap + 2 * hf, 2), 'v13' if kap >> 1 else 'v12',
                                                           off + 512 * hf + 8 * (kap & 1)))

    def g1_reads(self, s):
        A = self.A
        for tau in range(4):
            for hf in range(2):
                A('ds_read_b64_tr_b16 %s, %s offset:%d' % (v(self.BF + 16 * (s & 1) + 4 * tau + 2 * hf, 2), v(25 + tau),
                                                           128 * (32 * s + 16 * hf)))

    def g1_stats_ops(self, s):
        A = self.A
        for k in range(4):
            x = v(self.BF + 16 * (s & 1) + k)
            A('v_dot2c_f32_bf16 %s, s100, %s' % (v(self.ST), x))
            A('v_dot2c_f32_bf16 %s, %s, %s' % (v(self.ST + 1), x, x))

    def g1_pass(self, p, hooks=None):
        A = self.A
        hooks = hooks or {}
        acc = self.ACC1[p]
        A('s_mov_b32 s100, 0x3f803f80')
        A('v_mov_b32 %s, 0' % v(self.ST))
        A('v_mov_b32 %s, 0' % v(self.ST + 1))
        for s in range(16):
            if s % 4 == 0:
                if s == 0:
                    A.wait('h%d_0' % p)
                    self.barrier()
                    self.stamp('g1p%d_go' % p)
                    self.g1_reads(0)
            if s + 1 < 16:
                if (s + 1) % 4 == 0:
                    A.wait('h%d_%d' % (p, (s + 1) // 4))
                    A('s_barrier')
                self.g1_reads(s + 1)
            if s in hooks:
                hooks[s]()
            for tau in range(4):
                for c in range(3):
                    d = v(acc + 4 * (3 * tau + c), 4)
                    A('v_mfma_f32_16x16x32_bf16 %s, %s, %s, %s' % (d, a(4 * (3 * s + c), 4),
                                                                    v(self.BF + 16 * (s & 1) + 4 * tau, 4),
                                                                    d if s else '0'))
            self.g1_stats_ops(s)

    def g1_stats_publish(self, p):
        A = self.A
        S, T = self.ST, self.ET
        for sw in ('v_permlane32_swap_b32', 'v_permlane16_swap_b32'):
            for k in range(2):
                A('v_mov_b32 %s, %s' % (v(T + k), v(S + k)))
            for k in range(2):
                A('%s %s, %s' % (sw, v(T + k), v(S + k)))
            for k in range(2):
                A('v_add_f32 %s, %s, %s' % (v(S + k), v(S + k), v(T + k)))
        A('v_mov_b32 %s, %s' % (v(T + 4), v(S)))
        A('v_mov_b32 %s, %s' % (v(T + 5), v(S + 1)))
        self.ln_scalars(S, T + 4, T)
        A('v_cvt_pk_bf16_f32 %s, %s, %s' % (v(T), v(S), v(T + 2)))
        A('v_lshlrev_b32 %s, 16, %s' % (v(T + 4), v(T)))
        A('v_and_b32 %s, 0xffff0000, %s' % (v(T + 5), v(T)))
        A('ds_write_b64 v6, %s offset:%d' % (v(T + 4, 2), 512 * p))

    def g1_epilogue(self, p):
        A = self.A
        acc = self.ACC1[p]
        T = self.ET
        M = T
        SR = T + 8
        RH = T + 12
        O = T + 14
        E = T + 26
        assert O % 2 == 0
        for tau in range(4):
            A('ds_read_b64 %s, %s offset:%d' % (v(M + 2 * tau, 2), v(240 + tau), 512 * p))
        for pr in range(2):
            A('ds_read_b64 %s, %s offset:%d' % (v(SR + 2 * pr, 2), v(244 + pr), 512 * p))
        for pr in range(2):
            A('v_rcp_f32 %s, %s' % (v(RH + pr), v(SR + 2 * pr + 1)))
        A('s_mov_b32 %s, 0xbfb8aa3b' % sA)
        for pr in range(2):
            A('v_mul_f32 %s, %s, %s' % (v(RH + pr), sA, v(RH + pr)))
        for tau in range(4):
            for c in range(3):
                for r in range(4):
                    d = v(acc + 4 * (3 * tau + c) + r)
                    A('v_fma_f32 %s, -%s, %s, %s' % (d, v(M + 2 * tau), v(self.CS + 4 * c + r), d))
        for pr in range(2):
            for c in range(3):
                g0 = acc + 4 * (3 * (2 * pr) + c)
                u0 = acc + 4 * (3 * (2 * pr + 1) + c)
                for r in range(4):
                    A('v_permlane32_swap_b32 %s, %s' % (v(g0 + r), v(u0 + r)))
                for r in range(4):
                    A('v_mul_f32 %s, %s, %s' % (v(g0 + r), v(RH + pr), v(g0 + r)))
                for r in range(4):
                    A('v_exp_f32 %s, %s' % (v(g0 + r), v(g0 + r)))
                for r in range(4):
                    A('v_fma_f32 %s, %s, %s, %s' % (v(g0 + r), v(g0 + r), v(SR + 2 * pr + 1), v(SR + 2 * pr + 1)))
                for r in range(4):
                    A('v_rcp_f32 %s, %s' % (v(g0 + r), v(g0 + r)))
                for r in range(4):
                    A('v_mul_f32 %s, %s, %s' % (v(u0 + r), v(u0 + r), v(g0 + r)))
                dst = (O + 4 * pr + 2 * c) if c < 2 else (O + 8 + 2 * pr)
                for k in range(2):
                    A('v_cvt_pk_bf16_f32 %s, %s, %s' % (v(dst + k), v(u0 + 2 * k), v(u0 + 2 * k + 1)))
        A('v_permlane16_swap_b32 %s, %s' % (v(O + 8), v(O + 10)))
        A('v_permlane16_swap_b32 %s, %s' % (v(O + 9), v(O + 11)))
        l1, l2 = A.newlabel('L_hs'), A.newlabel('L_hs')
        A('s_mov_b32 %s, %d' % (sB, 64 * HH_PITCH * p))
        A('s_cmp_eq_u32 %s, 0' % sFAST)
        A('s_cbranch_scc1 %s' % l1)
        for fl in ('', ' sc1'):
            A.begin_arm()
            A('buffer_store_dwordx4 %s, v246, %s, %s offen%s' % (v(O, 4), SWS, sB, fl))
            A('buffer_store_dwordx4 %s, v247, %s, %s offen%s' % (v(O + 4, 4), SWS, sB, fl))
            A('buffer_store_dwordx4 %s, v248, %s, %s offen%s' % (v(O + 8, 4), SWS, sB, fl))
            if fl == '':
                A('s_branch %s' % l2)
            A.end_arm()
            A.label(l1 if fl == '' else l2)

    def rot_addr(self):
        A = self.A
        for r in range(4):
            A('s_add_u32 %s, %s, %d' % (sA, sW, r))
            A('s_and_b32 %s, %s, 3' % (sA, sA))
            A('s_lshl_b32 s%d, %s, 5' % (50 + r, sA))
        for r in (1, 2, 3, 0):
            A('v_xor_b32 %s, s%d, v25' % (v(25 + r), 50 + r))
        for r in range(4):
            A('s_lshl_b32 %s, s%d, 2' % (sA, 50 + r))
            A('v_add_u32 %s, %s, v7' % (v(240 + r), sA))
        A('v_cmp_gt_u32 vcc, 32, v1')
        for pr in range(2):
            A('v_cndmask_b32 %s, %s, %s, vcc' % (v(244 + pr), v(240 + 2 * pr + 1), v(240 + 2 * pr)))
        for r in range(4):
            A('s_mul_i32 s%d, s%d, %d' % (50 + r, 50 + r, HH_PITCH // 32))
        A('v_lshrrev_b32 v10, 5, v1')
        A('s_mov_b32 %s, %d' % (sA, HH_PITCH))
        A('v_mul_lo_u32 v10, v10, %s' % sA)
        A('v_sub_u32 v4, v4, v10')
        A('v_sub_u32 v5, v5, v10')
        A('v_bfe_u32 v11, v1, 4, 1')
        A('s_lshl_b32 %s, %s, 1' % (sA, sA))
        A('v_mul_lo_u32 v11, v11, %s' % sA)
        A('v_sub_u32 v5, v5, v11')
        for pr in range(2):
            A('v_mov_b32 v10, s%d' % (50 + 2 * pr + 1))
            A('v_mov_b32 v11, s%d' % (50 + 2 * pr))
            A('v_cndmask_b32 %s, v10, v11, vcc' % v(249 + pr))
            A('v_add_u32 %s, v4, %s' % (v(246 + pr), v(249 + pr)))
        A('v_and_b32 v10, 16, v1')
        A('v_cmp_eq_u32 vcc, 0, v10')
        A('v_cndmask_b32 v10, v250, v249, vcc')
        A('v_add_u32 v248, v5, v10')

    def f3_set(self, stage):
        A = self.A
        lab, l1 = A.newlabel('L_f3'), A.newlabel('L_f3')
        A('s_cmp_lg_u32 %s, 0' % sW)
        A('s_cbranch_scc1 %s' % lab)
        A.begin_arm()
        A('s_lshl_b32 %s, %s, 7' % (sA, sG))
        A('s_lshl_b32 %s, %s, 2' % (sB, sJ))
        A('s_add_u32 %s, %s, %s' % (sA, sA, sB))
        A('s_add_u32 %s, %s, %d' % (sA, sA, WS_F3 + 1024 * stage))
        A('v_mov_b32 v10, %s' % sA)
        A('v_mov_b32 v11, %s' % sT)
        A('s_mov_b64 exec, 1')
        A('s_cmp_eq_u32 %s, 0' % sFAST)
        A('s_cbranch_scc1 %s' % l1)
        A('buffer_store_dword v11, v10, %s, 0 offen' % SWS)
        A('s_mov_b64 exec, -1')
        A('s_branch %s' % lab)
        A.label(l1)
        A('buffer_store_dword v11, v10, %s, 0 offen sc1' % SWS)
        A('s_mov_b64 exec, -1')
        A.end_arm()
        A.label(lab)

    ACC2 = 128
    RES = 192

    def hh_reg(self, p, i, tau):
        if p == 0:
            return a(80 + 8 * i + 4 * tau, 4)
        return v(32 + 8 * i + 4 * tau, 4)

    def g2_addr(self):
        A = self.A
        A('v_min_u32 v14, 31, v1')
        A('s_lshl_b32 %s, %s, 7' % (sA, sG))
        A('s_add_u32 %s, %s, %d' % (sA, sA, WS_F3))
        A('v_lshl_add_u32 v14, v14, 2, %s' % sA)
        masks = []
        for w in range(4):
            lo, hi = (11 * w) // 3, min((11 * w + 10) // 3, 14)
            masks.append(sum(1 << (2 * cb) for cb in range(lo, hi + 1)))
        A('s_mov_b32 s101, 0x%x' % masks[0])
        for w in range(1, 4):
            A('s_cmp_eq_u32 %s, %d' % (sW, w))
            A('s_cselect_b32 s101, 0x%x, s101' % masks[w])
        A('s_lshr_b32 %s, %s, 4' % (sA, sJ))
        A('s_lshl_b32 s101, s101, %s' % sA)
        A('s_lshr_b32 %s, %s, 3' % (sA, sJ))
        A('s_lshl_b32 %s, %s, 1' % (sA, sA))
        A('s_lshl_b32 %s, %s, 3' % (sB, sG))
        A('s_add_u32 %s, %s, %s' % (sA, sA, sB))
        A('s_mul_i32 %s, %s, %d' % (sB, sA, HH_PITCH))
        A('s_mul_i32 %s, %s, %d' % (sC, sW, 11 * 1024))
        A('s_add_u32 %s, %s, %s' % (sB, sB, sC))
        A('s_add_u32 %s, %s, %d' % (sB, sB, WS_HH))
        A('v_lshl_add_u32 v15, v1, 4, %s' % sB)
        A('s_lshr_b32 %s, %s, 1' % (sB, sW))
        A('s_add_u32 %s, %s, %s' % (sA, sA, sB))
        A('s_lshl_b32 %s, %s, 4' % (sA, sA))
        A('s_and_b32 %s, %s, 7' % (sB, sJ))
        A('s_lshl_b32 %s, %s, 6' % (sB, sB))
        A('s_and_b32 %s, %s, 1' % (sC, sW))
        A('s_lshl_b32 %s, %s, 5' % (sC, sC))
        A('s_add_u32 %s, %s, %s' % (sB, sB, sC))
        A('v_add_u32 v10, %s, v2' % sA)
        A('v_lshl_add_u32 v11, v3, 3, %s' % sB)
        A('v_lshlrev_b32 v16, 12, v11')
        A('v_lshl_add_u32 v16, v10, 1, v16')
        A('v_add_u32 v16, %d, v16' % WS_HT)
        A('v_lshlrev_b32 v19, 10, v10')
        A('v_lshl_add_u32 v19, v11, 1, v19')
        A('s_lshl_b32 %s, %s, 13' % (sA, sW))
        A('s_add_u32 %s, %s, %d' % (sA, sA, H1))
        A('v_lshl_add_u32 v17, v1, 4, %s' % sA)
        A('s_lshl_b32 %s, %s, 11' % (sA, sW))
        A('s_add_u32 %s, %s, %d' % (sA, sA, H1))
        A('v_lshl_add_u32 v18, v1, 4, %s' % sA)

    def res_loads(self):
        A = self.A
        for e in range(16):
            A('v_mov_b32 %s, 0' % v(self.RES + e))
        for p in range(2):
            for e in range(8):
                A('s_mov_b32 %s, %d' % (sDd, 4096 * e))
                A('buffer_load_short_d16_hi %s, v16, %s, %s offen offset:%d sc1' % (v(self.RES + 8 * p + e), SWS, sDd,
                                                                                   2048 * p))

    def poll_f3(self, p):
        A = self.A
        loop, ok = 'L_pf%d' % p, 'L_pf%d_ok' % p
        A.wait(vm0=True)
        A.label(loop)
        A('buffer_load_dword v10, v14, %s, 0 offen offset:%d sc1' % (SWS, 1024 * p))
        A('s_waitcnt vmcnt(0)')
        A('v_cmp_eq_u32 vcc, %s, v10' % sT)
        A('s_and_b32 %s, vcc_lo, s101' % sA)
        A('s_cmp_eq_u32 %s, s101' % sA)
        A('s_cbranch_scc1 %s' % ok)
        self.spin_tail(loop, 5 + p)
        A.label(ok)

    def hh_loads(self, p):
        A = self.A
        for i in range(11):
            if i == 10:
                lab = A.newlabel('L_hl')
                A('s_cmp_eq_u32 %s, 3' % sW)
                A('s_cbranch_scc1 %s' % lab)
                A.begin_arm()
            for tau in range(2):
                off = 64 * HH_PITCH * p + HH_PITCH * tau + 1024 * i
                A('s_mov_b32 %s, %d' % (sDd, off & ~4095))
                A('buffer_load_dwordx4 %s, v15, %s, %s offen offset:%d sc1' % (self.hh_reg(p, i, tau), SWS, sDd,
                                                                              off & 4095))
            if i == 10:
                A.end_arm()
                A.label(lab)

    def g2_mfmas(self, p):
        A = self.A
        acc = self.ACC2 + 32 * p
        for i in range(11):
            if i == 10:
                lab = A.newlabel('L_gm')
                A('s_cmp_eq_u32 %s, 3' % sW)
                A('s_cbranch_scc1 %s' % lab)
                A.begin_arm()
            R = self.wd_reg(i)
            for tau in range(2):
                for kap in range(4):
                    d = v(acc + 4 * (4 * tau + kap), 4)
                    A('v_mfma_f32_16x16x32_bf16 %s, %s, %s, %s' % (d, R(4 * kap, 4), self.hh_reg(p, i, tau),
                                                                    d if i else '0'))
            if i == 10:
                A.end_arm()
                A.label(lab)

    def g2_finish(self, p):
        A = self.A
        acc = self.ACC2 + 32 * p
        for t in range(8):
            A('ds_write_b128 v17, %s offset:%d' % (v(acc + 4 * t, 4), 32768 * p + 1024 * t))
        self.barrier()
        for w in range(4):
            for k in range(2):
                A('ds_read_b128 %s, v18 offset:%d' % (v(acc + 8 * w + 4 * k, 4), 32768 * p + 8192 * w + 1024 * k))
        for w in range(4):
            for e in range(8):
                A('v_add_f32 %s, %s, %s' % (v(self.RES + 8 * p + e), v(self.RES + 8 * p + e), v(acc + 8 * w + e)))
        for k in range(4):
            A('v_cvt_pk_bf16_f32 %s, %s, %s' % (v(acc + k), v(self.RES + 8 * p + 2 * k), v(self.RES + 8 * p + 2 * k + 1)))
        A('s_mov_b32 %s, %d' % (sDd, 1024 * 1024 * p))
        A('buffer_store_dwordx4 %s, v19, %s, %s offen' % (v(acc, 4), SOUT, sDd))

    def done(self, name):
        if self.stop == name:
            self.A('s_branch L_fin')
            return True
        return False

    def build(self):
        A = self.A
        self.entry()
        self.p0_loads()
        self.w1_setup()
        self.w1_round(range(0, 5), [SLOT * i for i in range(5)], 'w1r1')
        self.p0_compute()
        self.k_image()
        self.x_stats()
        self.conv_addr()
        self.w1_tr_setup()
        self.barrier()
        self.kfrag_reads()
        self.stamp('kfrag')
        self.poll_u()
        self.stamp('u_seen')
        self.barrier()
        self.poll_x()
        self.w1_round(range(5, 10), [SLOT * i for i in range(5, 10)], 'w1r2')
        for c in range(5):
            self.w1_tr(c, SLOT * c)
        self.barrier()
        self.stamp('x_seen')
        self.epoch_store()
        self.conv_mfmas(range(0, 4), range(-3, 13))
        self.conv_pre(0)
        self.conv_red_write(0)
        self.barrier()
        self.conv_finish(0)
        self.w1_round(range(10, 15), [SLOT * i for i in range(5)], 'w1r3')
        self.conv_mfmas(range(4, 8), range(-3, 29))
        A.wait('h0')
        self.barrier()
        self.cnt_add(0)
        for c in range(5, 10):
            self.w1_tr(c, SLOT * c)
        self.conv_pre(1)
        self.conv_red_write(1)
        self.barrier()
        self.conv_finish(1)
        self.stamp('conv_done')
        self.w1_dma(15, C15, 'w1r4')
        self.gemm_addr()
        self.rot_addr()
        for i in range(4):
            self.wd_dma(i, H1 + 4096 * i, 16384, 'wdA')
        A.wait('h1')
        self.barrier()
        self.cnt_add(1)
        if not self.done('conv'):
            A.wait('w1r3', 'w1r4')
            self.barrier()
            for c in range(10, 15):
                self.w1_tr(c, SLOT * (c - 10))
            self.w1_tr(15, C15)
            self.barrier()
            self.wd_dma(9, MISC, 8192, 'wdM')
            lab = A.newlabel('L_wd10')
            A('s_cmp_eq_u32 %s, 3' % sW)
            A('s_cbranch_scc1 %s' % lab)
            A.begin_arm()
            self.wd_dma(10, MISC + 4096, 8192, 'wdM')
            A.end_arm()
            A.label(lab)
            self.colsum()
            self.stamp('w1_ready')
            self.poll_cnt(0)
            self.stamp('cnt0')
            self.h_dma(0)
            self.wd_base(H1, 16384)
            for i in range(4):
                self.wd_tr(i, 4096 * i)
            self.wd_base(MISC, 8192)
            self.wd_tr(9, 0)
            self.wd_tr(10, 4096)

            def mid():
                self.poll_cnt(1)
                self.h_dma(1)
                self.wd_dma(8, MISC, 8192, 'wdM2')
            self.g1_pass(0, hooks={7: mid})
            self.g1_stats_publish(0)
            self.barrier()
            self.stamp('g1p0_done')
            for i in range(4, 8):
                self.wd_dma(i, H0 + 4096 * (i - 4), 16384, 'wdB')
            self.g1_epilogue(0)
            A('s_mov_b32 %s, %d' % (sA, H1))
            for r in range(4):
                A('v_add_u32 %s, %s, %s' % (v(25 + r), sA, v(25 + r)))

            def pub0():
                A.wait(vm0=True)
                A('s_barrier')
                self.f3_set(0)
            self.g1_pass(1, hooks={7: pub0})
            self.g1_stats_publish(1)
            self.barrier()
            self.stamp('g1p1_done')
            self.g1_epilogue(1)
            self.g2_addr()
            A.wait(vm0=True)
            A('s_barrier')
            self.f3_set(1)
            self.stamp('hh_pub')
            if not self.done('g1'):
                self.res_loads()
                self.wd_base(H0, 16384)
                for i in range(4, 8):
                    self.wd_tr(i, 4096 * (i - 4))
                self.wd_base(MISC, 8192)
                self.wd_tr(8, 0)
                self.poll_f3(0)
                self.hh_loads(0)
                self.g2_mfmas(0)
                self.g2_finish(0)
                self.stamp('g2a_done')
                self.poll_f3(1)
                self.hh_loads(1)
                self.g2_mfmas(1)
                self.g2_finish(1)
        A.label('L_fin')
        if self.stamps:
            self.stamp('end')
            A('s_waitcnt lgkmcnt(0)')
            A('s_lshl_b32 %s, s2, 2' % sA)
            A('s_add_u32 %s, %s, %s' % (sA, sA, sW))
            A('s_lshl_b32 %s, %s, 7' % (sA, sA))
            A('s_add_u32 %s, %s, %d' % (sA, sA, WS_STAMP))
            A('s_mov_b64 exec, 1')
            A('v_mov_b32 v4, %s' % sA)
            for i in range(self.nst):
                A('v_mov_b32 v5, s%d' % (STAMP0 + 2 * i))
                A('buffer_store_dword v5, v4, %s, 0 offen offset:%d' % (SWS, 4 * i))
            A('s_lshl_b32 %s, s2, 2' % sA)
            A('s_add_u32 %s, %s, %s' % (sA, sA, sW))
            A('s_cmp_lg_u32 %s, %d' % (sA, 77 * 4))
            A('s_cbranch_scc1 L_end')
            A('v_mov_b32 v4, 0')
            for i in range(self.nst):
                A('s_sub_u32 %s, s%d, s%d' % (sA, STAMP0 + 2 * i, STAMP0))
                A('v_mov_b32 v5, %s' % sA)
                A('buffer_store_dword v5, v4, %s, 0 offen offset:%d' % (SDBG, 4 * i))
        A.label('L_end')
        A('s_endpgm')
        A.label('L_timeout')
        A('s_mov_b64 exec, 1')
        A('v_mov_b32 v4, %s' % sA)
        A('s_lshl_b32 %s, %s, 2' % (sA, sA))
        A('v_mov_b32 v5, %s' % sA)
        A('buffer_store_dword v4, v5, %s, 0 offen' % SDBG)
        A('s_endpgm')
        A.label('L_code_end')

    def text(self):
        self.build()
        body = render(self.A.finish())
        head = open(os.path.join(os.path.dirname(os.path.abspath(__file__)), '..', 'cdna_kernels', NAME + '.s.ref')).read()
        head = head.split('; Override launch geometry')[0]
        s = head
        s += '; @launch grid=(256,1,1) block=(256,1,1) lds=%d\n' % LDS_BYTES
        s += '.amdgcn_target "amdgcn-amd-amdhsa--gfx950"\n.text\n'
        s += '.set CODE_LAST, (L_code_end - L_pc - 4) & ~3\n'
        s += '.globl %s_kernel\n.p2align 8\n.type %s_kernel,@function\n%s_kernel:\n' % (NAME, NAME, NAME)
        s += body
        s += '''.section .rodata,"a"
.p2align 6
.amdhsa_kernel %s_kernel
  .amdhsa_next_free_vgpr 512
  .amdhsa_next_free_sgpr 102
  .amdhsa_accum_offset 256
  .amdhsa_group_segment_fixed_size 0
  .amdhsa_kernarg_size 104
  .amdhsa_user_sgpr_count 2
  .amdhsa_user_sgpr_kernarg_segment_ptr 1
  .amdhsa_system_sgpr_workgroup_id_x 1
  .amdhsa_float_denorm_mode_32 3
.end_amdhsa_kernel
''' % NAME
        return s


if __name__ == '__main__':
    import argparse
    ap = argparse.ArgumentParser()
    ap.add_argument('-o', default=None)
    ap.add_argument('--stop', default=None)
    ap.add_argument('--stamps', action='store_true')
    args = ap.parse_args()
    g = Gen(stop=args.stop, stamps=args.stamps)
    t = g.text()
    out = args.o or os.path.join(os.path.dirname(os.path.abspath(__file__)), '..', 'cdna_kernels', NAME + '.s')
    open(out, 'w').write(t)
    if args.stamps:
        open(out + '.stamps', 'w').write('\n'.join(g.stamp_names))
    print('wrote', out, len(t), 'bytes')
```
